```python
import torch

def _softmax(x, axis=-1):
    return torch.softmax(x, dim=axis)
def _gelu(x):
    return torch.nn.functional.gelu(x, approximate="tanh")
def _silu(x):
    return torch.nn.functional.silu(x)
def _sigmoid(x):
    return torch.sigmoid(x)
def _layernorm(x, axis=-1, eps=1e-5):
    m = x.mean(dim=axis, keepdim=True)
    v = x.var(dim=axis, keepdim=True, unbiased=False)
    return (x - m) / torch.sqrt(v + eps)
def _scatter_add(tgt, idx, src, axis=0):
    return tgt.clone().index_add_(axis, idx, src)
def _segment_sum(src, seg, n):
    out = torch.zeros((n,) + src.shape[1:], dtype=src.dtype)
    return out.index_add_(0, seg, src)
def _pad(x, pw):
    flat = tuple(v for pair in reversed(pw) for v in pair)
    return torch.nn.functional.pad(x, flat)

kernel_name = 'standalone__weight_only_int_quip__prompt'

def setup_inputs():

    _w = (lambda a: (lambda t: t.to(torch.bfloat16) if t.is_floating_point() else t)(torch.as_tensor(a)))
    B, S, D, F = 1, 2048, 640, 1536
    G = 128 if 128 > 0 else D
    D = (D // G) * G
    ng = D // G
    bits = 4 if 4 > 0 else 4
    qmax = 1 << bits
    qw = torch.randint(0, qmax, (D, F)).to(torch.int32)
    U, _ = (lambda *_a, **_k: torch.linalg.qr(*[torch.as_tensor(_x).float() for _x in _a], **_k))((lambda *s: torch.randn(*s, dtype=torch.bfloat16) * 0.05)(D, D))
    V, _ = (lambda *_a, **_k: torch.linalg.qr(*[torch.as_tensor(_x).float() for _x in _a], **_k))((lambda *s: torch.randn(*s, dtype=torch.bfloat16) * 0.05)(F, F))
    return {
        "x": _w((lambda *s: torch.randn(*s, dtype=torch.bfloat16) * 0.05)(B, S, D)),
        "qw": _w(qw),
        "scales": _w(torch.abs((lambda *s: torch.randn(*s, dtype=torch.bfloat16) * 0.05)(ng, F)) * 0.02 + 0.005),
        "zeros": _w(torch.full((ng, F), qmax / 2.0, dtype=float)),
        "U": _w(U.to(float)),
        "V": _w(V.to(float)),
    }

def reference(x, qw, scales, zeros, U, V):
    B, S, D = x.shape
    ng, F = scales.shape
    G = D // ng
    s = (lambda x, n, axis: torch.repeat_interleave(x, n, dim=axis))(scales, G, axis=0)
    z = (lambda x, n, axis: torch.repeat_interleave(x, n, dim=axis))(zeros, G, axis=0)
    wq = ((lambda x, dt: x.to(dt))(qw, x.dtype) - z) * s
    xr = torch.einsum("bsd,de->bse", x, U)
    h  = torch.einsum("bse,ef->bsf", xr, wq)
    y  = torch.einsum("bsf,fg->bsg", h, V)
    return y
```

```python
import sys
KN = "standalone__weight_only_int_quip__prompt_kernel"
WS_T, WS_X, FL_T, FL_X, WS_ST = 0, 0x200000, 0x500000, 0x510000, 0x600000
WS_SIZE = 0x700000

class E:
    def __init__(s):
        s.L = []; s.lds = 0; s.done = 0; s.nlab = 0
    def __call__(s, t):
        for l in t.split("\n"):
            l = l.strip()
            if l: s.L.append(l)
    def ds(s, t):
        s(t); s.lds += 1; return s.lds
    def need(s, n):
        if n <= s.done: return
        out = min(s.lds - n, 15)
        s(f"s_waitcnt lgkmcnt({out})"); s.done = s.lds - out
    def drain(s, extra=""):
        s(f"s_waitcnt {extra} lgkmcnt(0)"); s.done = s.lds
    def lab(s, p="L"):
        s.nlab += 1; return f"{p}_{s.nlab}"
    def text(s): return "\n".join((l if l.endswith(":") else "    " + l) for l in s.L)

def vr(b, n=4): return f"v[{b}:{b+n-1}]"
def ar(b, n=4): return f"a[{b}:{b+n-1}]"
def srd(e, d, lo, size):
    e(f"s_mov_b32 s{d}, s{lo}\ns_mov_b32 s{d+1}, s{lo+1}\ns_mov_b32 s{d+2}, {size}\ns_mov_b32 s{d+3}, 0x20000")

class Cfg:
    stamp = False
    out_flag = ""
    sleep = 1
    ld_flag = "sc1"

S_A, S_B, S_C, S_D, S_WS, S_OUT, S_DBG = 24, 28, 32, 36, 40, 44, 48
W, X, I = 52, 53, 54
NONCE = 90

def stamp(e, c, k):
    if c.stamp: e(f"s_memrealtime s[{64+2*k}:{65+2*k}]")

def prologue(e, c):
    stamp(e, c, 0)
    if c.stamp: e("s_memtime s[84:85]")
    e(f"""s_cmp_ge_u32 s2, 256
    s_cbranch_scc1 L_end
    s_load_dwordx16 s[4:19], s[0:1], 0
    s_load_dwordx2 s[20:21], s[0:1], 64
    v_lshrrev_b32 v2, 6, v0
    v_and_b32 v1, 63, v0
    v_readfirstlane_b32 s{W}, v2
    s_and_b32 s{X}, s2, 7
    s_lshr_b32 s{I}, s2, 3
    v_and_b32 v4, 15, v1
    v_lshrrev_b32 v5, 4, v1
    s_or_b32 s3, s2, s{W}
    s_cmp_lg_u32 s3, 0
    s_waitcnt lgkmcnt(0)""")
    srd(e, S_DBG, 18, 256)
    e(f"""s_cbranch_scc1 L_nononce
    s_memrealtime s[22:23]
    v_mov_b32 v2, 0
    s_waitcnt lgkmcnt(0)
    s_or_b32 s22, s22, 1
    v_mov_b32 v3, s22
    s_mov_b64 exec, 1
    buffer_store_dword v3, v2, s[{S_DBG}:{S_DBG+3}], 0 offen sc1
    s_mov_b64 exec, -1
    L_nononce:""")
    srd(e, S_WS, 20, WS_SIZE)
    e(f"s_cmp_ge_u32 s{I}, 24\ns_cbranch_scc1 L_xr")

def get_nonce_issue(e):
    e(f"v_mov_b32 v30, 0\nbuffer_load_dword v31, v30, s[{S_DBG}:{S_DBG+3}], 0 offen sc1")
def get_nonce_check(e, c):
    l1, l2 = e.lab("Lnon"), e.lab("Lnon")
    e(f"""s_mov_b32 s91, 0
    {l1}:
    v_readfirstlane_b32 s{NONCE}, v31
    s_add_u32 s91, s91, 1
    s_cmp_lg_u32 s{NONCE}, 0
    s_cbranch_scc1 {l2}
    s_cmp_gt_u32 s91, 0x100000
    s_cbranch_scc1 L_end
    buffer_load_dword v31, v30, s[{S_DBG}:{S_DBG+3}], 0 offen sc1
    s_waitcnt vmcnt(0)
    s_branch {l1}
    {l2}:""")

A_BASE, SC_BASE = 98304, 135168
QR, SCA, SCB, TMP, AF, BF, ACC = 32, 92, 100, 108, 128, 176, 208
J, CB, BND, SQ, SV, SM0, IT, QN = 55, 56, 57, 58, 59, 60, 61, 62

def dequant_ops(e, slot_q, slot_a, sc_a):
    ops = []
    for i in range(5):
        q = QR + slot_q * 20 + i * 4
        t = TMP + (i & 1) * 6
        if i >= 1:
            def sw(i=i):
                l = e.lab("Lsw")
                e(f"s_cmp_lg_u32 s{BND}, {i}\ns_cbranch_scc1 {l}")
                e.need(sc_a[1])
                for k in range(8): e(f"v_mov_b32 v{SCA+k}, v{SCB+k}")
                e(f"{l}:")
            ops.append(("sw", sw))
        for k in range(4): ops.append(("v", lambda k=k, q=q, t=t: e(f"v_cvt_f32_i32 v{t+k}, v{q+k}")))
        for k in range(4): ops.append(("v", lambda k=k, t=t: (e.need(sc_a[0]), e(f"v_fma_f32 v{t+k}, v{t+k}, v{SCA+k}, v{SCA+4+k}"))))
        for k in range(2): ops.append(("v", lambda k=k, t=t: e(f"v_cvt_pk_bf16_f32 v{t+4+k}, v{t+2*k}, v{t+2*k+1}")))
        ops.append(("w", lambda i=i, t=t: e.ds(f"ds_write_b64 v20, {vr(t+4,2)} offset:{128*(i&1)+1024*(i>>1)+12288*slot_a}")))
    return ops

def q_loads(e, slot):
    for i in range(5): e(f"buffer_load_dwordx4 {vr(QR+slot*20+i*4)}, v{6+i}, s[{S_A}:{S_A+3}], s{SQ} offen")
    e(f"s_add_u32 s{SQ}, s{SQ}, 512")
def v_dma(e, slot, half):
    if half == 0: e(f"s_add_u32 m0, s{SM0}, {slot*32768}\ns_add_u32 s63, s{SV}, 49152")
    else: e(f"s_add_u32 m0, s{SM0}, {slot*32768+4096}\ns_nop 0")
def v_dma_one(e, half, n):
    e(f"buffer_load_dwordx4 v{11+n}, s[{S_B}:{S_B+3}], s{SV if half == 0 else 63} offen offset:{1024*n} lds")
    if half == 1 and n == 3: e(f"s_add_u32 s{SV}, s{SV}, {128*3072}")

def scale_reads(e, u):
    a0 = e.ds(f"ds_read_b128 {vr(SCA)}, v21 offset:{u*256}")
    a1 = e.ds(f"ds_read_b128 {vr(SCA+4)}, v21 offset:{u*256+16}")
    b0 = e.ds(f"ds_read_b128 {vr(SCB)}, v21 offset:{u*256+3072}")
    b1 = e.ds(f"ds_read_b128 {vr(SCB+4)}, v21 offset:{u*256+3072+16}")
    return (a1, b1)

def t_role(e, c):
    e(f"""s_and_b32 s{J}, s{X}, 1
    s_lshl_b32 s{J}, s{J}, 3
    s_and_b32 s3, s{I}, 7
    s_add_u32 s{J}, s{J}, s3
    s_lshr_b32 s{CB}, s{X}, 1
    s_mul_i32 s{CB}, s{CB}, 3
    s_lshr_b32 s3, s{I}, 3
    s_add_u32 s{CB}, s{CB}, s3""")
    srd(e, S_C, 8, 15360); srd(e, S_D, 10, 15360)
    e(f"""s_mul_i32 s22, s{J}, 40
    s_lshr_b32 s23, s22, 7
    s_add_u32 s3, s22, 39
    s_lshr_b32 s63, s3, 7
    s_lshl_b32 s3, s63, 7
    s_sub_u32 s3, s3, s22
    s_lshr_b32 s3, s3, 3
    s_cmp_eq_u32 s23, s63
    s_cselect_b32 s{BND}, 5, s3
    s_mul_i32 s23, s23, 3072
    s_mul_i32 s63, s63, 3072
    s_lshl_b32 s3, s{W}, 6
    s_add_u32 s23, s23, s3
    s_add_u32 s63, s63, s3
    v_and_b32 v2, 7, v1
    v_lshrrev_b32 v3, 3, v1
    v_lshlrev_b32 v25, 3, v2
    v_lshl_add_u32 v25, v3, 8, v25
    v_add_u32 v22, s23, v25
    v_add_u32 v24, s63, v25
    v_add_u32 v23, 2048, v22
    v_subrev_u32 v26, 1024, v24
    v_add_u32 v24, 1024, v24
    v_cmp_gt_u32 vcc, 32, v1
    s_mul_i32 s{SQ}, s22, 6144
    s_lshl_b32 s3, s{W}, 7
    v_cndmask_b32 v23, v26, v23, vcc
    s_add_u32 s{SQ}, s{SQ}, s3""")
    for n in range(3):
        e(f"buffer_load_dwordx2 {vr(AF+4*n,2)}, v{22+n}, s[{S_C}:{S_C+3}], 0 offen")
        e(f"buffer_load_dwordx2 {vr(AF+4*n+2,2)}, v{22+n}, s[{S_D}:{S_D+3}], 0 offen")
    srd(e, S_A, 6, 640*6144); srd(e, S_B, 14, 1536*3072)
    e(f"""s_mov_b32 s3, 6144
    v_lshlrev_b32 v6, 4, v2
    v_mad_u32_u24 v6, v3, s3, v6
    v_add_u32 v7, {49152}, v6
    v_add_u32 v8, {2*49152}, v6
    v_add_u32 v9, {3*49152}, v6
    v_add_u32 v10, {4*49152}, v6""")
    q_loads(e, 0); q_loads(e, 1)
    e(f"""s_mov_b32 s3, 3072
    v_lshlrev_b32 v25, 1, v5
    v_xor_b32 v25, v25, v4
    v_lshlrev_b32 v26, 4, v25
    v_mad_u32_u24 v11, v5, s3, v26
    v_xor_b32 v26, 128, v26
    v_mad_u32_u24 v12, v5, s3, v26
    v_add_u32 v12, {12288-1024}, v12
    v_add_u32 v13, {2*(12288-1024)}, v11
    v_add_u32 v14, {2*(12288-1024)}, v12
    s_mul_i32 s{SV}, s{W}, {32*3072}
    s_lshl_b32 s3, s{CB}, 8
    s_add_u32 s{SV}, s{SV}, s3
    s_lshl_b32 s{SM0}, s{W}, 13""")
    for h in range(2):
        v_dma(e, 0, h)
        for n in range(4): v_dma_one(e, h, n)
    q_loads(e, 2)
    for h in range(2):
        v_dma(e, 1, h)
        for n in range(4): v_dma_one(e, h, n)
    if c.stamp: e("s_memrealtime s[88:89]")
    e(f"""v_lshrrev_b32 v25, 2, v4
    v_and_b32 v26, 1, v5
    v_lshl_add_u32 v26, v26, 2, v25
    v_lshlrev_b32 v26, 1, v26
    v_bfe_u32 v27, v1, 1, 1
    s_lshl_b32 s3, s{W}, 2
    v_add_u32 v27, s3, v27
    v_xor_b32 v27, v27, v26
    v_lshlrev_b32 v27, 4, v27
    v_and_b32 v26, 1, v1
    v_lshl_add_u32 v27, v26, 3, v27
    v_lshl_add_u32 v25, v5, 2, v25
    v_lshl_add_u32 v15, v25, 8, v27
    v_xor_b32 v16, 32, v15
    v_add_u32 v17, 0x10000, v15
    v_add_u32 v18, 0x10000, v16
    v_lshlrev_b32 v25, 1, v5
    v_xor_b32 v25, v25, v4
    v_lshlrev_b32 v25, 4, v25
    v_lshl_add_u32 v19, v5, 8, v25
    v_add_u32 v19, {A_BASE}, v19
    v_and_b32 v25, 3, v2
    v_lshlrev_b32 v26, 1, v25
    v_xor_b32 v26, v26, v3
    v_lshlrev_b32 v26, 4, v26
    v_lshl_add_u32 v26, v25, 8, v26
    v_lshrrev_b32 v25, 2, v2
    v_lshl_add_u32 v26, v25, 3, v26
    s_mul_i32 s3, s{W}, 3072
    s_add_u32 s3, s3, {A_BASE}
    v_add_u32 v20, s3, v26
    s_mul_i32 s3, s{W}, 6144
    s_add_u32 s3, s3, {SC_BASE}
    v_lshlrev_b32 v25, 5, v2
    v_add_u32 v21, s3, v25
    v_lshlrev_b32 v25, 5, v1
    v_add_u32 v25, s3, v25
    s_mov_b32 s{IT}, 0
    s_waitcnt vmcnt(31)""")
    for k in range(24): e(f"v_mov_b32 v{ACC+k}, 0")
    for n in range(3):
        s, z, t = AF + 4*n, AF + 4*n + 2, BF + 8*n
        e(f"""v_lshlrev_b32 v{t}, 16, v{s}
        v_and_b32 v{t+1}, 0xffff0000, v{s}
        v_lshlrev_b32 v{t+2}, 16, v{s+1}
        v_and_b32 v{t+3}, 0xffff0000, v{s+1}
        v_lshlrev_b32 v{t+4}, 16, v{z}
        v_and_b32 v{t+5}, 0xffff0000, v{z}
        v_lshlrev_b32 v{t+6}, 16, v{z+1}
        v_and_b32 v{t+7}, 0xffff0000, v{z+1}""")
        for k in range(4): e(f"v_mul_f32_e64 v{t+4+k}, -v{t+4+k}, v{t+k}")
        e.ds(f"ds_write_b128 v25, {vr(t)} offset:{2048*n}")
        e.ds(f"ds_write_b128 v25, {vr(t+4)} offset:{2048*n+16}")
    e.drain()
    sc = scale_reads(e, 0)
    e(f"v_add_u32 v21, 256, v21\ns_waitcnt vmcnt(26)")
    e.need(sc[1])
    for k, op in dequant_ops(e, 0, 0, sc): op()
    q_loads(e, 0)
    e.drain("vmcnt(18)")
    stamp(e, c, 1)
    e("L_tloop:")
    for u in range(3):
        e("s_barrier")
        if u == 1:
            e(f"s_cmp_lt_u32 s{IT}, 3\ns_cselect_b32 s{S_B+2}, s{S_B+2}, 0")
        if u == 2:
            e(f"s_cmp_lt_u32 s{IT}, 2\ns_cselect_b32 s{S_A+2}, s{S_A+2}, 0")
        rd = {}
        rq = []
        for sl in range(4):
            for t in range(3):
                rq.append(lambda sl=sl, t=t: rd.__setitem__((sl, "a", t), e.ds(f"ds_read_b128 {vr(AF+(sl*3+t)*4)}, v19 offset:{u*12288+sl*3072+t*1024}")))
                if t < 2:
                    for h in range(2):
                        rq.append(lambda sl=sl, t=t, h=h: rd.__setitem__((sl, "b", t), e.ds(f"ds_read_b64_tr_b16 {vr(BF+(sl*2+t)*4+2*h,2)}, v{(15 if u < 2 else 17) + t} offset:{(u&1 if u<2 else 0)*32768+sl*8192+h*4096}")))
        def rds(n):
            for _ in range(n):
                if rq: rq.pop(0)()
        vs = (u+2) % 3; qs = (u+1) % 3
        def V(n):
            if n % 4 == 0: v_dma(e, vs, n // 4)
            v_dma_one(e, n // 4, n % 4)
        def Q(i):
            e(f"buffer_load_dwordx4 {vr(QR+qs*20+i*4)}, v{6+i}, s[{S_A}:{S_A+3}], s{SQ} offen")
            if i == 4: e(f"s_add_u32 s{SQ}, s{SQ}, 512")
        sc = scale_reads(e, u)
        rds(3); V(0); rds(4)
        dq = dequant_ops(e, qs, qs, sc)
        nv = [0]
        def fill(n):
            while n > 0 and dq:
                k, op = dq.pop(0)
                if k == "sw": e.need(sc[1])
                op()
                if k == "v": n -= 1; nv[0] += 1
        fill(4); V(1)
        vm = {0: ("q", 0), 2: ("v", 2), 4: ("v", 3), 6: ("q", 1), 8: ("v", 4), 10: ("v", 5), 12: ("q", 2), 14: ("v", 6), 16: ("v", 7), 18: ("q", 3), 21: ("q", 4)}
        n = 0
        for sl in range(4):
            for t in range(3):
                for uu in range(2):
                    e.need(max(rd[sl, "a", t], rd[sl, "b", uu]))
                    acc = vr(ACC + (t*2+uu)*4)
                    e(f"v_mfma_f32_16x16x32_bf16 {acc}, {vr(AF+(sl*3+t)*4)}, {vr(BF+(sl*2+uu)*4)}, {acc}")
                    rds(2 if n % 6 == 0 else 1)
                    fill(2)
                    if n in vm:
                        kind, i = vm[n]
                        if kind == "v": V(i)
                        else:
                            assert nv[0] >= 10*i + 4
                            Q(i)
                    n += 1
        fill(99)
        if u == 2:
            e(f"v_add_u32 v21, 768, v21\ns_add_u32 s{IT}, s{IT}, 1\ns_cmp_lt_u32 s{IT}, 4")
        e.drain("vmcnt(15)")
    e("s_cbranch_scc1 L_tloop")
    stamp(e, c, 2)
    get_nonce_issue(e)
    e(f"""s_lshl_b32 s3, s{CB}, 3
    s_lshl_b32 s22, s{W}, 1
    s_add_u32 s3, s3, s22
    s_mul_i32 s3, s3, 20480
    s_lshl_b32 s22, s{J}, 10
    s_add_u32 s22, s22, s3
    s_lshr_b32 s23, s{J}, 2
    s_add_u32 s23, s23, 16
    s_lshl_b32 s23, s23, 10
    s_add_u32 s23, s23, s3
    s_and_b32 s3, s{J}, 3
    s_lshl_b32 s3, s3, 8
    s_add_u32 s23, s23, s3
    v_lshlrev_b32 v2, 4, v1
    v_lshlrev_b32 v3, 4, v4
    v_lshl_add_u32 v3, v5, 3, v3""")
    for uu in range(2):
        for t in range(3):
            a = ACC + (t*2+uu)*4
            d = AF + uu*8 + t*2
            e(f"v_cvt_pk_bf16_f32 v{d}, v{a}, v{a+1}\nv_cvt_pk_bf16_f32 v{d+1}, v{a+2}, v{a+3}")
    e(f"""s_add_u32 s63, s22, 20480
    buffer_store_dwordx4 {vr(AF)}, v2, s[{S_WS}:{S_WS+3}], s22 offen sc1
    buffer_store_dwordx4 {vr(AF+8)}, v2, s[{S_WS}:{S_WS+3}], s63 offen sc1
    s_add_u32 s63, s23, 20480
    s_mov_b32 exec_hi, 0
    buffer_store_dwordx2 {vr(AF+4,2)}, v3, s[{S_WS}:{S_WS+3}], s23 offen sc1
    buffer_store_dwordx2 {vr(AF+12,2)}, v3, s[{S_WS}:{S_WS+3}], s63 offen sc1
    s_mov_b64 exec, -1
    s_lshl_b32 s3, s{CB}, 4
    s_add_u32 s3, s3, s{J}
    s_lshl_b32 s3, s3, 7
    s_add_u32 s92, s3, {FL_T}
    s_branch L_publish""")

XA, XB, XACC = 32, 72, 128
AA, SB, SX, SU, SLOT, DSLOT = 55, 56, 58, 59, 60, 62
def xr_dma(e):
    e(f"s_lshl_b32 s3, s{W}, 12\ns_add_u32 m0, s{DSLOT}, s3\ns_mul_i32 s22, s{W}, 5120")
    for n in range(4): e(f"buffer_load_dwordx4 v{6+n}, s[{S_A}:{S_A+3}], s{SX} offen offset:{1024*n} lds")
    e(f"s_add_u32 s22, s22, s{DSLOT}\ns_add_u32 m0, s22, 16384\ns_add_u32 s{SX}, s{SX}, 128")
    for n in range(4): e(f"buffer_load_dwordx4 v{10+n}, s[{S_B}:{S_B+3}], s{SU} offen offset:{1024*n} lds")
    e(f"s_add_u32 m0, s22, {16384+4096}\ns_add_u32 s{DSLOT}, s{DSLOT}, 36864")
    e(f"buffer_load_dwordx4 v14, s[{S_B}:{S_B+3}], s{SU} offen lds")
    e(f"s_add_u32 s{SU}, s{SU}, {64*1280}\ns_cmp_eq_u32 s{DSLOT}, {4*36864}\ns_cselect_b32 s{DSLOT}, 0, s{DSLOT}")

def xr_role(e, c):
    e("L_xr:")
    srd(e, S_A, 4, 2048*1280); srd(e, S_B, 12, 640*1280)
    e(f"""s_sub_u32 s3, s{I}, 24
    s_and_b32 s{AA}, s3, 3
    s_lshr_b32 s3, s3, 2
    s_lshl_b32 s{SB}, s{X}, 1
    s_add_u32 s{SB}, s{SB}, s3
    s_lshl_b32 s3, s{SB}, 2
    s_add_u32 s3, s3, s{W}
    s_mul_i32 s{SX}, s3, {32*1280}
    s_mul_i32 s{SU}, s{W}, {16*1280}
    s_mul_i32 s3, s{AA}, 320
    s_add_u32 s{SU}, s{SU}, s3
    s_mov_b32 s{DSLOT}, 0
    s_mov_b32 s{SLOT}, 0
    s_mov_b32 s{IT}, 0
    s_mov_b32 s23, 1280
    v_and_b32 v2, 7, v1
    v_lshrrev_b32 v3, 3, v1
    v_xor_b32 v25, v2, v5
    v_lshlrev_b32 v25, 4, v25
    v_mad_u32_u24 v6, v3, s23, v25
    v_xor_b32 v25, 64, v25
    v_mad_u32_u24 v7, v3, s23, v25
    v_add_u32 v7, {10240-1024}, v7
    v_add_u32 v8, {2*(10240-1024)}, v6
    v_add_u32 v9, {2*(10240-1024)}, v7""")
    for n in range(5):
        e(f"""v_add_u32 v25, {64*n}, v1
        v_mul_u32_u24 v26, 3277, v25
        v_lshrrev_b32 v26, 16, v26
        v_mul_u32_u24 v27, 20, v26
        v_sub_u32 v27, v25, v27
        v_lshrrev_b32 v25, 3, v26
        v_lshlrev_b32 v25, 1, v25
        v_xor_b32 v27, v27, v25
        v_lshlrev_b32 v27, 4, v27
        v_mad_u32_u24 v{10+n}, v26, s23, v27""")
        if 0 < n < 4: e(f"v_subrev_u32 v{10+n}, {1024*n}, v{10+n}")
    for k in range(3): xr_dma(e)
    if c.stamp: e("s_memrealtime s[88:89]")
    e(f"""s_and_b32 s3, s{W}, 1
    s_mul_i32 s3, s3, 160
    v_and_b32 v2, 3, v1
    v_lshrrev_b32 v3, 2, v4
    v_lshl_add_u32 v3, v5, 3, v3
    v_mul_u32_u24 v3, 320, v3
    v_add_u32 v3, 16384, v3
    v_and_b32 v29, 1, v5
    v_lshlrev_b32 v29, 5, v29
    v_lshlrev_b32 v25, 3, v2
    v_add_u32 v25, s3, v25""")
    for tt in range(4):
        e(f"v_add_u32 v26, {80*(tt>>1)+32*(tt&1)}, v25\nv_xor_b32 v26, v26, v29\nv_add_u32 v{15+tt}, v26, v3")
    e(f"""v_lshrrev_b32 v26, 1, v2
    v_mul_u32_u24 v26, 80, v26
    v_and_b32 v27, 1, v2
    v_lshl_add_u32 v26, v27, 3, v26
    s_add_u32 s3, s3, 64
    v_add_u32 v26, s3, v26
    v_xor_b32 v26, v26, v29
    v_add_u32 v19, v26, v3
    v_lshrrev_b32 v25, 1, v4
    v_xor_b32 v25, v25, v5
    v_lshlrev_b32 v25, 4, v25
    v_lshl_add_u32 v25, v4, 7, v25
    s_lshr_b32 s3, s{W}, 1
    s_lshl_b32 s3, s3, 13
    v_add_u32 v20, s3, v25
    v_xor_b32 v21, 64, v20""")
    for k in range(80): e(f"v_mov_b32 v{XACC+k}, 0")
    e("s_waitcnt vmcnt(18)")
    stamp(e, c, 1)
    e("L_xloop:\ns_barrier")
    for k in range(7): e(f"v_add_u32 v{22+k}, s{SLOT}, v{15+k}")
    rd = {}; rq = []
    for sl in range(2):
        for tt in range(5):
            for h in range(2):
                rq.append(lambda sl=sl, tt=tt, h=h: rd.__setitem__((sl, "a", tt), e.ds(f"ds_read_b64_tr_b16 {vr(XA+sl*20+tt*4+2*h,2)}, v{22+tt} offset:{(32*sl+4*h)*320}")))
            if tt < 4: rq.append(lambda sl=sl, tt=tt: rd.__setitem__((sl, "b", tt), e.ds(f"ds_read_b128 {vr(XB+sl*16+tt*4)}, v{27+sl} offset:{tt*2048}")))
    def rds(n):
        for _ in range(n):
            if rq: rq.pop(0)()
    rds(6)
    e(f"s_cmp_lt_u32 s{IT}, 7\ns_cselect_b32 s{S_A+2}, s{S_A+2}, 0\ns_cselect_b32 s{S_B+2}, s{S_B+2}, 0")
    e2 = E(); xr_dma(e2)
    grp = []; cur = []
    for l in e2.L:
        cur.append(l)
        if l.startswith("buffer_load"): grp.append(cur); cur = []
    grp[-1] += cur
    e("\n".join(grp.pop(0))); rds(3)
    e(f"s_add_u32 s{SLOT}, s{SLOT}, 36864\ns_cmp_eq_u32 s{SLOT}, {4*36864}\ns_cselect_b32 s{SLOT}, 0, s{SLOT}")
    n = 0
    for sl in range(2):
        order = sorted([(tt, s4) for tt in range(5) for s4 in range(4)], key=lambda p: (max(p[0], p[1]), p))
        for (tt, s4) in order:
            while rq and len(rq) > 28 - 14*sl - min(14, 3*max(tt, s4) + 3): rds(1)
            e.need(max(rd[sl, "a", tt], rd[sl, "b", s4]))
            acc = vr(XACC + (tt*4+s4)*4)
            e(f"v_mfma_f32_16x16x32_bf16 {acc}, {vr(XA+sl*20+tt*4)}, {vr(XB+sl*16+s4*4)}, {acc}")
            rds(1)
            if n % 4 == 2 and grp: e("\n".join(grp.pop(0)))
            n += 1
    assert not grp and not rq
    e(f"s_add_u32 s{IT}, s{IT}, 1\ns_cmp_lt_u32 s{IT}, 10")
    e.drain("vmcnt(18)")
    e("s_cbranch_scc1 L_xloop")
    stamp(e, c, 2)
    get_nonce_issue(e)
    e(f"""s_lshl_b32 s3, s{SB}, 3
    s_lshr_b32 s22, s{W}, 1
    s_lshl_b32 s22, s22, 2
    s_add_u32 s3, s3, s22
    s_mul_i32 s3, s3, 20480
    s_add_u32 s3, s3, {WS_X}
    s_and_b32 s63, s{W}, 1
    s_lshl_b32 s22, s{AA}, 1
    s_add_u32 s22, s22, s63
    s_lshl_b32 s22, s22, 11
    s_add_u32 s22, s22, s3
    s_add_u32 s23, s{AA}, 16
    s_lshl_b32 s23, s23, 10
    s_add_u32 s23, s23, s3
    s_lshl_b32 s63, s63, 9
    s_add_u32 s23, s23, s63
    v_lshlrev_b32 v2, 4, v1
    v_lshrrev_b32 v3, 1, v5
    v_lshlrev_b32 v3, 8, v3
    v_lshl_add_u32 v3, v4, 4, v3
    v_and_b32 v25, 1, v5
    v_lshl_add_u32 v3, v25, 3, v3""")
    for s4 in range(4):
        d = XA + s4*12
        for tt in range(5):
            a = XACC + (tt*4+s4)*4
            e(f"v_cvt_pk_bf16_f32 v{d+2*tt}, v{a}, v{a+1}\nv_cvt_pk_bf16_f32 v{d+2*tt+1}, v{a+2}, v{a+3}")
        e(f"""buffer_store_dwordx4 {vr(d)}, v2, s[{S_WS}:{S_WS+3}], s22 offen sc1
        buffer_store_dwordx4 {vr(d+4)}, v2, s[{S_WS}:{S_WS+3}], s22 offen offset:1024 sc1
        buffer_store_dwordx2 {vr(d+8,2)}, v3, s[{S_WS}:{S_WS+3}], s23 offen sc1""")
        if s4 < 3: e(f"s_add_u32 s22, s22, 20480\ns_add_u32 s23, s23, 20480")
    e(f"""s_lshl_b32 s3, s{SB}, 2
    s_add_u32 s3, s3, s{AA}
    s_lshl_b32 s3, s3, 7
    s_add_u32 s92, s3, {FL_X}""")

SB2, GB = 55, 56
TF, YACC = 32, 96
def poll(e, c, addr, first_loaded):
    l1, l2 = e.lab("Lp"), e.lab("Lp")
    e("s_mov_b32 s91, 0")
    if not first_loaded: e(f"buffer_load_dword v29, v{addr}, s[{S_WS}:{S_WS+3}], 0 offen sc1\ns_waitcnt vmcnt(0)")
    e(f"""{l1}:
    v_cmp_ne_u32 vcc, s{NONCE}, v29
    s_add_u32 s91, s91, 1
    s_cmp_gt_u32 s91, 0x100000
    s_cbranch_scc1 L_end
    s_nop 1
    s_cbranch_vccz {l2}
    s_sleep {c.sleep}
    buffer_load_dword v29, v{addr}, s[{S_WS}:{S_WS+3}], 0 offen sc1
    s_waitcnt vmcnt(0)
    s_branch {l1}
    {l2}:""")

def phase2(e, c):
    e(f"""L_publish:
    s_and_b32 s{SB2}, s{X}, 1
    s_lshl_b32 s{SB2}, s{SB2}, 3
    s_and_b32 s3, s{I}, 7
    s_add_u32 s{SB2}, s{SB2}, s3
    s_lshr_b32 s{GB}, s{X}, 1
    s_lshl_b32 s{GB}, s{GB}, 2
    s_lshr_b32 s3, s{I}, 3
    s_add_u32 s{GB}, s{GB}, s3
    s_lshl_b32 s3, s{SB2}, 9
    s_add_u32 s3, s3, {FL_X}
    v_and_b32 v27, 3, v1
    v_lshlrev_b32 v27, 7, v27
    v_add_u32 v27, s3, v27
    buffer_load_dword v29, v27, s[{S_WS}:{S_WS+3}], 0 offen sc1
    s_mul_i32 s3, s{GB}, 96
    s_lshr_b32 s22, s3, 7
    s_add_u32 s3, s3, 95
    s_lshr_b32 s23, s3, 7
    s_lshl_b32 s22, s22, 11
    s_lshl_b32 s23, s23, 11
    s_sub_u32 s23, s23, s22
    s_add_u32 s22, s22, {FL_T}
    v_and_b32 v28, 1, v5
    v_mul_u32_u24 v28, s23, v28
    v_lshl_add_u32 v28, v4, 7, v28
    v_add_u32 v28, s22, v28
    v_lshlrev_b32 v2, 4, v1
    s_lshl_b32 s3, s{SB2}, 2
    s_add_u32 s3, s3, s{W}
    s_mul_i32 s58, s3, 40960
    s_add_u32 s58, s58, {WS_X}
    s_waitcnt vmcnt(0)""")
    stamp(e, c, 3)
    e("s_barrier")
    get_nonce_check(e, c)
    e(f"""s_cmp_lg_u32 s{W}, 0
    s_cbranch_scc1 L_noflag
    v_mov_b32 v25, s92
    s_mov_b64 exec, 1
    buffer_store_dword v31, v25, s[{S_WS}:{S_WS+3}], 0 offen sc1
    s_mov_b64 exec, -1
    L_noflag:""")
    poll(e, c, 27, True)
    stamp(e, c, 4)
    for n in range(40):
        if n % 4 == 0 and n: e("s_add_u32 s58, s58, 4096")
        e(f"buffer_load_dwordx4 {ar(4*n)}, v2, s[{S_WS}:{S_WS+3}], s58 offen offset:{1024*(n%4)} {c.ld_flag}")
    srd(e, S_OUT, 16, 2048*3072)
    e(f"""v_add_u32 v6, 19456, v2
    v_add_u32 v7, {2*19456}, v2
    v_add_u32 v8, 0x10000, v2
    s_and_b32 s3, s{W}, 1
    s_mul_i32 s22, s{GB}, 6
    s_mul_i32 s23, s3, 3
    s_add_u32 s22, s22, s23
    s_mul_i32 s59, s22, 20480
    s_lshr_b32 s22, s{W}, 1
    s_lshl_b32 s23, s22, 10
    s_add_u32 s59, s59, s23
    s_mul_i32 s60, s22, 6144
    s_mul_i32 s3, s3, 3072
    s_add_u32 s60, s60, s3
    s_mul_i32 s3, s{W}, 6656
    s_add_u32 s3, s3, 122880
    v_mul_u32_u24 v9, 208, v4
    v_lshl_add_u32 v9, v5, 3, v9
    v_add_u32 v9, s3, v9
    s_mov_b32 s22, 3072""")
    for n in range(3):
        e(f"""v_add_u32 v25, {64*n}, v1
        v_mul_u32_u24 v26, 5462, v25
        v_lshrrev_b32 v26, 16, v26
        v_mul_u32_u24 v27, 12, v26
        v_sub_u32 v27, v25, v27
        v_lshlrev_b32 v27, 4, v27
        v_mad_u32_u24 v{13+n}, v26, s22, v27
        v_mul_u32_u24 v26, 208, v26
        v_add3_u32 v{10+n}, v26, v27, s3""")
    e(f"""s_lshl_b32 s3, s{SB2}, 2
    s_add_u32 s3, s3, s{W}
    s_mul_i32 s61, s3, {32*3072}
    s_mul_i32 s3, s{GB}, 192
    s_add_u32 s61, s61, s3
    s_add_u32 s62, s61, 49152
    s_cmp_lg_u32 s{W}, 0
    s_cbranch_scc1 L_nopoll""")
    poll(e, c, 28, False)
    e("L_nopoll:\ns_barrier")
    stamp(e, c, 5)
    for p in range(10):
        e(f"s_add_u32 m0, s60, {p*12288}")
        e("s_nop 0" if p == 0 else "s_add_u32 s59, s59, 2048")
        for i3, v in enumerate((2, 6, 7)):
            e(f"buffer_load_dwordx4 v{v}, s[{S_WS}:{S_WS+3}], s59 offen offset:{1024*i3} {c.ld_flag} lds")
    chunks = [1, 1, 2, 2, 4]
    bar_at = {}; acc_p = 0
    for ch in chunks:
        bar_at[2*acc_p] = 3 * (10 - acc_p - ch); acc_p += ch
    rd = {}
    def bar(k):
        if k in bar_at:
            e(f"s_waitcnt vmcnt({bar_at[k]})\ns_barrier")
            if k == 0 and c.stamp:
                stamp(e, c, 6); e.drain()
    def read(k, g):
        off = (6*k + g) * 1024
        rd[k, g] = e.ds(f"ds_read_b128 {vr(TF+((k&1)*6+g)*4)}, v{2 if off < 65536 else 8} offset:{off & 65535}")
    bar(0)
    for g in range(6): read(0, g)
    for k in range(20):
        for g in range(6):
            for v in range(2):
                e.need(rd[k, g])
                acc = vr(YACC + (g*2+v)*4)
                e(f"v_mfma_f32_16x16x32_bf16 {acc}, {vr(TF+((k&1)*6+g)*4)}, {ar((20*v+k)*4)}, {acc if k else 0}")
                if k + 1 < 20:
                    if g == 0 and v == 0: bar(k + 1)
                    if v == 0: read(k + 1, g)
    if c.stamp: stamp(e, c, 7)
    e("s_nop 7")
    for v in range(2):
        for g in range(6):
            a = YACC + (g*2+v)*4; d = TF + (v*6+g)*2
            e(f"v_cvt_pk_bf16_f32 v{d}, v{a}, v{a+1}\nv_cvt_pk_bf16_f32 v{d+1}, v{a+2}, v{a+3}")
            e.ds(f"ds_write_b64 v9, {vr(d,2)} offset:{v*3328+g*32}")
    e.drain()
    r = []
    for h in range(2):
        for n in range(3): r.append(e.ds(f"ds_read_b128 {vr(64+(h*3+n)*4)}, v{10+n} offset:{h*3328}"))
    for h in range(2):
        for n in range(3):
            e.need(r[h*3+n])
            e(f"buffer_store_dwordx4 {vr(64+(h*3+n)*4)}, v{13+n}, s[{S_OUT}:{S_OUT+3}], s{61+h} offen {c.out_flag}")
    if c.stamp:
        stamp(e, c, 8); e("s_waitcnt vmcnt(0)"); stamp(e, c, 9); e("s_memtime s[86:87]\ns_waitcnt lgkmcnt(0)\ns_sub_u32 s84, s86, s84\ns_mov_b32 s86, s88")
        e(f"s_waitcnt lgkmcnt(0)\ns_lshl_b32 s3, s2, 2\ns_add_u32 s3, s3, s{W}\ns_lshl_b32 s3, s3, 6\ns_add_u32 s3, s3, {WS_ST}\nv_mov_b32 v2, s3\ns_mov_b64 exec, 1")
        for k in range(12): e(f"v_mov_b32 v{32+k}, s{64+2*k}")
        for k in range(3): e(f"buffer_store_dwordx4 {vr(32+4*k)}, v2, s[{S_WS}:{S_WS+3}], 0 offen offset:{16*k}")
    e("L_end:\ns_endpgm")

def generate(c):
    e = E()
    prologue(e, c); t_role(e, c); xr_role(e, c); phase2(e, c)
    head = open("standalone__weight_only_int_quip__prompt.s.ref").read().split("; Override")[0]
    return f"""{head}; y = (x U) (dequant(qw) V): 192 workgroups build T = Wq V, 64 build xr = x U, then all 256 compute y = xr T.
; @launch grid=(256,1,1) block=(256,1,1) lds=159744
.amdgcn_target "amdgcn-amd-amdhsa--gfx950"
.text
.globl {KN}
.p2align 8
.type {KN},@function
{KN}:
{e.text()}
.section .rodata,"a"
.p2align 6
.amdhsa_kernel {KN}
  .amdhsa_next_free_vgpr 416
  .amdhsa_next_free_sgpr 96
  .amdhsa_accum_offset 256
  .amdhsa_group_segment_fixed_size 0
  .amdhsa_kernarg_size 72
  .amdhsa_user_sgpr_count 2
  .amdhsa_user_sgpr_kernarg_segment_ptr 1
  .amdhsa_system_sgpr_workgroup_id_x 1
.end_amdhsa_kernel
"""
if __name__ == "__main__":
    c = Cfg()
    out = sys.argv[1]
    for kv in sys.argv[2:]:
        k, v = kv.split("=")
        setattr(c, k, type(getattr(c, k))(int(v)) if isinstance(getattr(c, k), (bool, int)) else v.replace("_", " "))
    open(out, "w").write(generate(c))
```

```python
import sys
KN = "standalone__weight_only_int_quip__prompt_kernel"
WS_T, WS_X, FL_T, FL_X, WS_ST = 0, 0x200000, 0x500000, 0x510000, 0x600000
WS_SIZE = 0x700000

class E:
    def __init__(s):
        s.L = []; s.lds = 0; s.done = 0; s.nlab = 0
    def __call__(s, t):
        for l in t.split("\n"):
            l = l.strip()
            if l: s.L.append(l)
    def ds(s, t):
        s(t); s.lds += 1; return s.lds
    def need(s, n):
        if n <= s.done: return
        out = min(s.lds - n, 15)
        s(f"s_waitcnt lgkmcnt({out})"); s.done = s.lds - out
    def drain(s, extra=""):
        s(f"s_waitcnt {extra} lgkmcnt(0)"); s.done = s.lds
    def lab(s, p="L"):
        s.nlab += 1; return f"{p}_{s.nlab}"
    def text(s): return "\n".join((l if l.endswith(":") else "    " + l) for l in s.L)

def vr(b, n=4): return f"v[{b}:{b+n-1}]"
def ar(b, n=4): return f"a[{b}:{b+n-1}]"
def srd(e, d, lo, size):
    e(f"s_mov_b32 s{d}, s{lo}\ns_mov_b32 s{d+1}, s{lo+1}\ns_mov_b32 s{d+2}, {size}\ns_mov_b32 s{d+3}, 0x20000")

class Cfg:
    stamp = False
    out_flag = ""
    sleep = 1
    ld_flag = "sc1"
    amp = ""

S_A, S_B, S_C, S_D, S_WS, S_OUT, S_DBG = 24, 28, 32, 36, 40, 44, 48
W, X, I = 52, 53, 54
NONCE = 90

def stamp(e, c, k):
    if c.stamp: e(f"s_memrealtime s[{64+2*k}:{65+2*k}]")

def prologue(e, c):
    stamp(e, c, 0)
    if c.stamp: e("s_memtime s[84:85]")
    e(f"""s_cmp_ge_u32 s2, 256
    s_cbranch_scc1 L_end
    s_load_dwordx16 s[4:19], s[0:1], 0
    s_load_dwordx2 s[20:21], s[0:1], 64
    v_lshrrev_b32 v2, 6, v0
    v_and_b32 v1, 63, v0
    v_readfirstlane_b32 s{W}, v2
    s_and_b32 s{X}, s2, 7
    s_lshr_b32 s{I}, s2, 3
    v_and_b32 v4, 15, v1
    v_lshrrev_b32 v5, 4, v1
    s_or_b32 s3, s2, s{W}
    s_cmp_lg_u32 s3, 0
    s_waitcnt lgkmcnt(0)""")
    srd(e, S_DBG, 18, 256)
    e(f"""s_cbranch_scc1 L_nononce
    s_memrealtime s[22:23]
    v_mov_b32 v2, 0
    s_waitcnt lgkmcnt(0)
    s_or_b32 s22, s22, 1
    v_mov_b32 v3, s22
    s_mov_b64 exec, 1
    buffer_store_dword v3, v2, s[{S_DBG}:{S_DBG+3}], 0 offen sc1
    s_mov_b64 exec, -1
    L_nononce:""")
    srd(e, S_WS, 20, WS_SIZE)
    e(f"s_cmp_ge_u32 s{I}, 24\ns_cbranch_scc1 L_xr")

def get_nonce_issue(e):
    e(f"v_mov_b32 v30, 0\nbuffer_load_dword v31, v30, s[{S_DBG}:{S_DBG+3}], 0 offen sc1")
def get_nonce_check(e, c):
    l1, l2 = e.lab("Lnon"), e.lab("Lnon")
    e(f"""s_mov_b32 s91, 0
    {l1}:
    v_readfirstlane_b32 s{NONCE}, v31
    s_add_u32 s91, s91, 1
    s_cmp_lg_u32 s{NONCE}, 0
    s_cbranch_scc1 {l2}
    s_cmp_gt_u32 s91, 0x100000
    s_cbranch_scc1 L_end
    buffer_load_dword v31, v30, s[{S_DBG}:{S_DBG+3}], 0 offen sc1
    s_waitcnt vmcnt(0)
    s_branch {l1}
    {l2}:""")

A_BASE, SC_BASE = 98304, 135168
QR, SCA, SCB, TMP, AF, BF, ACC = 32, 92, 100, 108, 128, 176, 208
J, CB, BND, SQ, SV, SM0, IT, QN = 55, 56, 57, 58, 59, 60, 61, 62

def dequant_ops(e, slot_q, slot_a, sc_a):
    ops = []
    for i in range(5):
        q = QR + slot_q * 20 + i * 4
        t = TMP + (i & 1) * 6
        if i >= 1:
            def sw(i=i):
                l = e.lab("Lsw")
                e(f"s_cmp_lg_u32 s{BND}, {i}\ns_cbranch_scc1 {l}")
                e.need(sc_a[1])
                for k in range(8): e(f"v_mov_b32 v{SCA+k}, v{SCB+k}")
                e(f"{l}:")
            ops.append(("sw", sw))
        for k in range(4): ops.append(("v", lambda k=k, q=q, t=t: e(f"v_cvt_f32_i32 v{t+k}, v{q+k}")))
        for k in range(4): ops.append(("v", lambda k=k, t=t: (e.need(sc_a[0]), e(f"v_fma_f32 v{t+k}, v{t+k}, v{SCA+k}, v{SCA+4+k}"))))
        for k in range(2): ops.append(("v", lambda k=k, t=t: e(f"v_cvt_pk_bf16_f32 v{t+4+k}, v{t+2*k}, v{t+2*k+1}")))
        ops.append(("w", lambda i=i, t=t: e.ds(f"ds_write_b64 v20, {vr(t+4,2)} offset:{128*(i&1)+1024*(i>>1)+12288*slot_a}")))
    return ops

def q_loads(e, slot):
    for i in range(5): e(f"buffer_load_dwordx4 {vr(QR+slot*20+i*4)}, v{6+i}, s[{S_A}:{S_A+3}], s{SQ} offen")
    e(f"s_add_u32 s{SQ}, s{SQ}, 512")
def v_dma(e, slot, half):
    if half == 0: e(f"s_add_u32 m0, s{SM0}, {slot*32768}\ns_add_u32 s63, s{SV}, 49152")
    else: e(f"s_add_u32 m0, s{SM0}, {slot*32768+4096}\ns_nop 0")
def v_dma_one(e, half, n):
    e(f"buffer_load_dwordx4 v{11+n}, s[{S_B}:{S_B+3}], s{SV if half == 0 else 63} offen offset:{1024*n} lds")
    if half == 1 and n == 3: e(f"s_add_u32 s{SV}, s{SV}, {128*3072}")

def scale_reads(e, u):
    a0 = e.ds(f"ds_read_b128 {vr(SCA)}, v21 offset:{u*256}")
    a1 = e.ds(f"ds_read_b128 {vr(SCA+4)}, v21 offset:{u*256+16}")
    b0 = e.ds(f"ds_read_b128 {vr(SCB)}, v21 offset:{u*256+3072}")
    b1 = e.ds(f"ds_read_b128 {vr(SCB+4)}, v21 offset:{u*256+3072+16}")
    return (a1, b1)

def t_role(e, c):
    e(f"""s_and_b32 s{J}, s{X}, 1
    s_lshl_b32 s{J}, s{J}, 3
    s_and_b32 s3, s{I}, 7
    s_add_u32 s{J}, s{J}, s3
    s_lshr_b32 s{CB}, s{X}, 1
    s_mul_i32 s{CB}, s{CB}, 3
    s_lshr_b32 s3, s{I}, 3
    s_add_u32 s{CB}, s{CB}, s3""")
    srd(e, S_C, 8, 15360); srd(e, S_D, 10, 15360)
    e(f"""s_mul_i32 s22, s{J}, 40
    s_lshr_b32 s23, s22, 7
    s_add_u32 s3, s22, 39
    s_lshr_b32 s63, s3, 7
    s_lshl_b32 s3, s63, 7
    s_sub_u32 s3, s3, s22
    s_lshr_b32 s3, s3, 3
    s_cmp_eq_u32 s23, s63
    s_cselect_b32 s{BND}, 5, s3
    s_mul_i32 s23, s23, 3072
    s_mul_i32 s63, s63, 3072
    s_lshl_b32 s3, s{W}, 6
    s_add_u32 s23, s23, s3
    s_add_u32 s63, s63, s3
    v_and_b32 v2, 7, v1
    v_lshrrev_b32 v3, 3, v1
    v_lshlrev_b32 v25, 3, v2
    v_lshl_add_u32 v25, v3, 8, v25
    v_add_u32 v22, s23, v25
    v_add_u32 v24, s63, v25
    v_add_u32 v23, 2048, v22
    v_subrev_u32 v26, 1024, v24
    v_add_u32 v24, 1024, v24
    v_cmp_gt_u32 vcc, 32, v1
    s_mul_i32 s{SQ}, s22, 6144
    s_lshl_b32 s3, s{W}, 7
    v_cndmask_b32 v23, v26, v23, vcc
    s_add_u32 s{SQ}, s{SQ}, s3""")
    for n in range(3):
        e(f"buffer_load_dwordx2 {vr(AF+4*n,2)}, v{22+n}, s[{S_C}:{S_C+3}], 0 offen")
        e(f"buffer_load_dwordx2 {vr(AF+4*n+2,2)}, v{22+n}, s[{S_D}:{S_D+3}], 0 offen")
    srd(e, S_A, 6, 640*6144); srd(e, S_B, 14, 1536*3072)
    e(f"""s_mov_b32 s3, 6144
    v_lshlrev_b32 v6, 4, v2
    v_mad_u32_u24 v6, v3, s3, v6
    v_add_u32 v7, {49152}, v6
    v_add_u32 v8, {2*49152}, v6
    v_add_u32 v9, {3*49152}, v6
    v_add_u32 v10, {4*49152}, v6""")
    q_loads(e, 0); q_loads(e, 1)
    e(f"""s_mov_b32 s3, 3072
    v_lshlrev_b32 v25, 1, v5
    v_xor_b32 v25, v25, v4
    v_lshlrev_b32 v26, 4, v25
    v_mad_u32_u24 v11, v5, s3, v26
    v_xor_b32 v26, 128, v26
    v_mad_u32_u24 v12, v5, s3, v26
    v_add_u32 v12, {12288-1024}, v12
    v_add_u32 v13, {2*(12288-1024)}, v11
    v_add_u32 v14, {2*(12288-1024)}, v12
    s_mul_i32 s{SV}, s{W}, {32*3072}
    s_lshl_b32 s3, s{CB}, 8
    s_add_u32 s{SV}, s{SV}, s3
    s_lshl_b32 s{SM0}, s{W}, 13""")
    for h in range(2):
        v_dma(e, 0, h)
        for n in range(4): v_dma_one(e, h, n)
    q_loads(e, 2)
    for h in range(2):
        v_dma(e, 1, h)
        for n in range(4): v_dma_one(e, h, n)
    if c.stamp: e("s_memrealtime s[88:89]")
    e(f"""v_lshrrev_b32 v25, 2, v4
    v_and_b32 v26, 1, v5
    v_lshl_add_u32 v26, v26, 2, v25
    v_lshlrev_b32 v26, 1, v26
    v_bfe_u32 v27, v1, 1, 1
    s_lshl_b32 s3, s{W}, 2
    v_add_u32 v27, s3, v27
    v_xor_b32 v27, v27, v26
    v_lshlrev_b32 v27, 4, v27
    v_and_b32 v26, 1, v1
    v_lshl_add_u32 v27, v26, 3, v27
    v_lshl_add_u32 v25, v5, 2, v25
    v_lshl_add_u32 v15, v25, 8, v27
    v_xor_b32 v16, 32, v15
    v_add_u32 v17, 0x10000, v15
    v_add_u32 v18, 0x10000, v16
    v_lshlrev_b32 v25, 1, v5
    v_xor_b32 v25, v25, v4
    v_lshlrev_b32 v25, 4, v25
    v_lshl_add_u32 v19, v5, 8, v25
    v_add_u32 v19, {A_BASE}, v19
    v_and_b32 v25, 3, v2
    v_lshlrev_b32 v26, 1, v25
    v_xor_b32 v26, v26, v3
    v_lshlrev_b32 v26, 4, v26
    v_lshl_add_u32 v26, v25, 8, v26
    v_lshrrev_b32 v25, 2, v2
    v_lshl_add_u32 v26, v25, 3, v26
    s_mul_i32 s3, s{W}, 3072
    s_add_u32 s3, s3, {A_BASE}
    v_add_u32 v20, s3, v26
    s_mul_i32 s3, s{W}, 6144
    s_add_u32 s3, s3, {SC_BASE}
    v_lshlrev_b32 v25, 5, v2
    v_add_u32 v21, s3, v25
    v_lshlrev_b32 v25, 5, v1
    v_add_u32 v25, s3, v25
    s_mov_b32 s{IT}, 0
    s_waitcnt vmcnt(31)""")
    for k in range(24): e(f"v_mov_b32 v{ACC+k}, 0")
    for n in range(3):
        s, z, t = AF + 4*n, AF + 4*n + 2, BF + 8*n
        e(f"""v_lshlrev_b32 v{t}, 16, v{s}
        v_and_b32 v{t+1}, 0xffff0000, v{s}
        v_lshlrev_b32 v{t+2}, 16, v{s+1}
        v_and_b32 v{t+3}, 0xffff0000, v{s+1}
        v_lshlrev_b32 v{t+4}, 16, v{z}
        v_and_b32 v{t+5}, 0xffff0000, v{z}
        v_lshlrev_b32 v{t+6}, 16, v{z+1}
        v_and_b32 v{t+7}, 0xffff0000, v{z+1}""")
        for k in range(4): e(f"v_mul_f32_e64 v{t+4+k}, -v{t+4+k}, v{t+k}")
        e.ds(f"ds_write_b128 v25, {vr(t)} offset:{2048*n}")
        e.ds(f"ds_write_b128 v25, {vr(t+4)} offset:{2048*n+16}")
    e.drain()
    sc = scale_reads(e, 0)
    e(f"v_add_u32 v21, 256, v21\ns_waitcnt vmcnt(26)")
    e.need(sc[1])
    for k, op in dequant_ops(e, 0, 0, sc): op()
    q_loads(e, 0)
    e.drain("vmcnt(18)")
    stamp(e, c, 1)
    e("L_tloop:")
    for u in range(3):
        e("s_barrier")
        if u == 1:
            e(f"s_cmp_lt_u32 s{IT}, 3\ns_cselect_b32 s{S_B+2}, s{S_B+2}, 0")
        if u == 2:
            e(f"s_cmp_lt_u32 s{IT}, 2\ns_cselect_b32 s{S_A+2}, s{S_A+2}, 0")
        rd = {}
        rq = []
        for sl in range(4):
            for t in range(3):
                rq.append(lambda sl=sl, t=t: rd.__setitem__((sl, "a", t), e.ds(f"ds_read_b128 {vr(AF+(sl*3+t)*4)}, v19 offset:{u*12288+sl*3072+t*1024}")))
                if t < 2:
                    for h in range(2):
                        rq.append(lambda sl=sl, t=t, h=h: rd.__setitem__((sl, "b", t), e.ds(f"ds_read_b64_tr_b16 {vr(BF+(sl*2+t)*4+2*h,2)}, v{(15 if u < 2 else 17) + t} offset:{(u&1 if u<2 else 0)*32768+sl*8192+h*4096}")))
        def rds(n):
            for _ in range(n):
                if rq: rq.pop(0)()
        vs = (u+2) % 3; qs = (u+1) % 3
        def V(n):
            if n % 4 == 0: v_dma(e, vs, n // 4)
            v_dma_one(e, n // 4, n % 4)
        def Q(i):
            e(f"buffer_load_dwordx4 {vr(QR+qs*20+i*4)}, v{6+i}, s[{S_A}:{S_A+3}], s{SQ} offen")
            if i == 4: e(f"s_add_u32 s{SQ}, s{SQ}, 512")
        sc = scale_reads(e, u)
        rds(3); V(0); rds(4)
        dq = dequant_ops(e, qs, qs, sc)
        nv = [0]
        def fill(n):
            while n > 0 and dq:
                k, op = dq.pop(0)
                if k == "sw": e.need(sc[1])
                op()
                if k == "v": n -= 1; nv[0] += 1
        fill(4); V(1)
        vm = {0: ("q", 0), 2: ("v", 2), 4: ("v", 3), 6: ("q", 1), 8: ("v", 4), 10: ("v", 5), 12: ("q", 2), 14: ("v", 6), 16: ("v", 7), 18: ("q", 3), 21: ("q", 4)}
        n = 0
        for sl in range(4):
            for t in range(3):
                for uu in range(2):
                    e.need(max(rd[sl, "a", t], rd[sl, "b", uu]))
                    acc = vr(ACC + (t*2+uu)*4)
                    e(f"v_mfma_f32_16x16x32_bf16 {acc}, {vr(AF+(sl*3+t)*4)}, {vr(BF+(sl*2+uu)*4)}, {acc}")
                    rds(2 if n % 6 == 0 else 1)
                    fill(2)
                    if n in vm:
                        kind, i = vm[n]
                        if kind == "v": V(i)
                        else:
                            assert nv[0] >= 10*i + 4
                            Q(i)
                    n += 1
        fill(99)
        if u == 2:
            e(f"v_add_u32 v21, 768, v21\ns_add_u32 s{IT}, s{IT}, 1\ns_cmp_lt_u32 s{IT}, 4")
        e.drain("vmcnt(15)")
    e("s_cbranch_scc1 L_tloop")
    stamp(e, c, 2)
    get_nonce_issue(e)
    e(f"""s_lshl_b32 s3, s{CB}, 3
    s_lshl_b32 s22, s{W}, 1
    s_add_u32 s3, s3, s22
    s_mul_i32 s3, s3, 20480
    s_lshl_b32 s22, s{J}, 10
    s_add_u32 s22, s22, s3
    s_lshr_b32 s23, s{J}, 2
    s_add_u32 s23, s23, 16
    s_lshl_b32 s23, s23, 10
    s_add_u32 s23, s23, s3
    s_and_b32 s3, s{J}, 3
    s_lshl_b32 s3, s3, 8
    s_add_u32 s23, s23, s3
    v_lshlrev_b32 v2, 4, v1
    v_lshlrev_b32 v3, 4, v4
    v_lshl_add_u32 v3, v5, 3, v3""")
    for uu in range(2):
        for t in range(3):
            a = ACC + (t*2+uu)*4
            d = AF + uu*8 + t*2
            e(f"v_cvt_pk_bf16_f32 v{d}, v{a}, v{a+1}\nv_cvt_pk_bf16_f32 v{d+1}, v{a+2}, v{a+3}")
    e(f"""s_add_u32 s63, s22, 20480
    buffer_store_dwordx4 {vr(AF)}, v2, s[{S_WS}:{S_WS+3}], s22 offen sc1
    buffer_store_dwordx4 {vr(AF+8)}, v2, s[{S_WS}:{S_WS+3}], s63 offen sc1
    s_add_u32 s63, s23, 20480
    s_mov_b32 exec_hi, 0
    buffer_store_dwordx2 {vr(AF+4,2)}, v3, s[{S_WS}:{S_WS+3}], s23 offen sc1
    buffer_store_dwordx2 {vr(AF+12,2)}, v3, s[{S_WS}:{S_WS+3}], s63 offen sc1
    s_mov_b64 exec, -1
    s_lshl_b32 s3, s{CB}, 4
    s_add_u32 s3, s3, s{J}
    s_lshl_b32 s3, s3, 7
    s_add_u32 s92, s3, {FL_T}
    s_branch L_publish""")

XA, XB, XACC = 32, 72, 128
AA, SB, SX, SU, SLOT, DSLOT = 55, 56, 58, 59, 60, 62
def xr_dma(e):
    e(f"s_lshl_b32 s3, s{W}, 12\ns_add_u32 m0, s{DSLOT}, s3\ns_mul_i32 s22, s{W}, 5120")
    for n in range(4): e(f"buffer_load_dwordx4 v{6+n}, s[{S_A}:{S_A+3}], s{SX} offen offset:{1024*n} lds")
    e(f"s_add_u32 s22, s22, s{DSLOT}\ns_add_u32 m0, s22, 16384\ns_add_u32 s{SX}, s{SX}, 128")
    for n in range(4): e(f"buffer_load_dwordx4 v{10+n}, s[{S_B}:{S_B+3}], s{SU} offen offset:{1024*n} lds")
    e(f"s_add_u32 m0, s22, {16384+4096}\ns_add_u32 s{DSLOT}, s{DSLOT}, 36864")
    e(f"buffer_load_dwordx4 v14, s[{S_B}:{S_B+3}], s{SU} offen lds")
    e(f"s_add_u32 s{SU}, s{SU}, {64*1280}\ns_cmp_eq_u32 s{DSLOT}, {4*36864}\ns_cselect_b32 s{DSLOT}, 0, s{DSLOT}")

def xr_role(e, c):
    e("L_xr:")
    srd(e, S_A, 4, 2048*1280); srd(e, S_B, 12, 640*1280)
    e(f"""s_sub_u32 s3, s{I}, 24
    s_and_b32 s{AA}, s3, 3
    s_lshr_b32 s3, s3, 2
    s_lshl_b32 s{SB}, s{X}, 1
    s_add_u32 s{SB}, s{SB}, s3
    s_lshl_b32 s3, s{SB}, 2
    s_add_u32 s3, s3, s{W}
    s_mul_i32 s{SX}, s3, {32*1280}
    s_mul_i32 s{SU}, s{W}, {16*1280}
    s_mul_i32 s3, s{AA}, 320
    s_add_u32 s{SU}, s{SU}, s3
    s_mov_b32 s{DSLOT}, 0
    s_mov_b32 s{SLOT}, 0
    s_mov_b32 s{IT}, 0
    s_mov_b32 s23, 1280
    v_and_b32 v2, 7, v1
    v_lshrrev_b32 v3, 3, v1
    v_xor_b32 v25, v2, v5
    v_lshlrev_b32 v25, 4, v25
    v_mad_u32_u24 v6, v3, s23, v25
    v_xor_b32 v25, 64, v25
    v_mad_u32_u24 v7, v3, s23, v25
    v_add_u32 v7, {10240-1024}, v7
    v_add_u32 v8, {2*(10240-1024)}, v6
    v_add_u32 v9, {2*(10240-1024)}, v7""")
    for n in range(5):
        e(f"""v_add_u32 v25, {64*n}, v1
        v_mul_u32_u24 v26, 3277, v25
        v_lshrrev_b32 v26, 16, v26
        v_mul_u32_u24 v27, 20, v26
        v_sub_u32 v27, v25, v27
        v_lshrrev_b32 v25, 3, v26
        v_lshlrev_b32 v25, 1, v25
        v_xor_b32 v27, v27, v25
        v_lshlrev_b32 v27, 4, v27
        v_mad_u32_u24 v{10+n}, v26, s23, v27""")
        if 0 < n < 4: e(f"v_subrev_u32 v{10+n}, {1024*n}, v{10+n}")
    for k in range(3): xr_dma(e)
    if c.stamp: e("s_memrealtime s[88:89]")
    e(f"""s_and_b32 s3, s{W}, 1
    s_mul_i32 s3, s3, 160
    v_and_b32 v2, 3, v1
    v_lshrrev_b32 v3, 2, v4
    v_lshl_add_u32 v3, v5, 3, v3
    v_mul_u32_u24 v3, 320, v3
    v_add_u32 v3, 16384, v3
    v_and_b32 v29, 1, v5
    v_lshlrev_b32 v29, 5, v29
    v_lshlrev_b32 v25, 3, v2
    v_add_u32 v25, s3, v25""")
    for tt in range(4):
        e(f"v_add_u32 v26, {80*(tt>>1)+32*(tt&1)}, v25\nv_xor_b32 v26, v26, v29\nv_add_u32 v{15+tt}, v26, v3")
    e(f"""v_lshrrev_b32 v26, 1, v2
    v_mul_u32_u24 v26, 80, v26
    v_and_b32 v27, 1, v2
    v_lshl_add_u32 v26, v27, 3, v26
    s_add_u32 s3, s3, 64
    v_add_u32 v26, s3, v26
    v_xor_b32 v26, v26, v29
    v_add_u32 v19, v26, v3
    v_lshrrev_b32 v25, 1, v4
    v_xor_b32 v25, v25, v5
    v_lshlrev_b32 v25, 4, v25
    v_lshl_add_u32 v25, v4, 7, v25
    s_lshr_b32 s3, s{W}, 1
    s_lshl_b32 s3, s3, 13
    v_add_u32 v20, s3, v25
    v_xor_b32 v21, 64, v20""")
    for k in range(80): e(f"v_mov_b32 v{XACC+k}, 0")
    e("s_waitcnt vmcnt(18)")
    stamp(e, c, 1)
    e("L_xloop:\ns_barrier")
    for k in range(7): e(f"v_add_u32 v{22+k}, s{SLOT}, v{15+k}")
    rd = {}; rq = []
    for sl in range(2):
        for tt in range(5):
            for h in range(2):
                rq.append(lambda sl=sl, tt=tt, h=h: rd.__setitem__((sl, "a", tt), e.ds(f"ds_read_b64_tr_b16 {vr(XA+sl*20+tt*4+2*h,2)}, v{22+tt} offset:{(32*sl+4*h)*320}")))
            if tt < 4: rq.append(lambda sl=sl, tt=tt: rd.__setitem__((sl, "b", tt), e.ds(f"ds_read_b128 {vr(XB+sl*16+tt*4)}, v{27+sl} offset:{tt*2048}")))
    def rds(n):
        for _ in range(n):
            if rq: rq.pop(0)()
    rds(6)
    e(f"s_cmp_lt_u32 s{IT}, 7\ns_cselect_b32 s{S_A+2}, s{S_A+2}, 0\ns_cselect_b32 s{S_B+2}, s{S_B+2}, 0")
    e2 = E(); xr_dma(e2)
    grp = []; cur = []
    for l in e2.L:
        cur.append(l)
        if l.startswith("buffer_load"): grp.append(cur); cur = []
    grp[-1] += cur
    e("\n".join(grp.pop(0))); rds(3)
    e(f"s_add_u32 s{SLOT}, s{SLOT}, 36864\ns_cmp_eq_u32 s{SLOT}, {4*36864}\ns_cselect_b32 s{SLOT}, 0, s{SLOT}")
    n = 0
    for sl in range(2):
        order = sorted([(tt, s4) for tt in range(5) for s4 in range(4)], key=lambda p: (max(p[0], p[1]), p))
        for (tt, s4) in order:
            while rq and len(rq) > 28 - 14*sl - min(14, 3*max(tt, s4) + 3): rds(1)
            e.need(max(rd[sl, "a", tt], rd[sl, "b", s4]))
            acc = vr(XACC + (tt*4+s4)*4)
            e(f"v_mfma_f32_16x16x32_bf16 {acc}, {vr(XA+sl*20+tt*4)}, {vr(XB+sl*16+s4*4)}, {acc}")
            rds(1)
            if n % 4 == 2 and grp: e("\n".join(grp.pop(0)))
            n += 1
    assert not grp and not rq
    e(f"s_add_u32 s{IT}, s{IT}, 1\ns_cmp_lt_u32 s{IT}, 10")
    e.drain("vmcnt(18)")
    e("s_cbranch_scc1 L_xloop")
    stamp(e, c, 2)
    get_nonce_issue(e)
    e(f"""s_lshl_b32 s3, s{SB}, 3
    s_lshr_b32 s22, s{W}, 1
    s_lshl_b32 s22, s22, 2
    s_add_u32 s3, s3, s22
    s_mul_i32 s3, s3, 20480
    s_add_u32 s3, s3, {WS_X}
    s_and_b32 s63, s{W}, 1
    s_lshl_b32 s22, s{AA}, 1
    s_add_u32 s22, s22, s63
    s_lshl_b32 s22, s22, 11
    s_add_u32 s22, s22, s3
    s_add_u32 s23, s{AA}, 16
    s_lshl_b32 s23, s23, 10
    s_add_u32 s23, s23, s3
    s_lshl_b32 s63, s63, 9
    s_add_u32 s23, s23, s63
    v_lshlrev_b32 v2, 4, v1
    v_lshrrev_b32 v3, 1, v5
    v_lshlrev_b32 v3, 8, v3
    v_lshl_add_u32 v3, v4, 4, v3
    v_and_b32 v25, 1, v5
    v_lshl_add_u32 v3, v25, 3, v3""")
    for s4 in range(4):
        d = XA + s4*12
        for tt in range(5):
            a = XACC + (tt*4+s4)*4
            e(f"v_cvt_pk_bf16_f32 v{d+2*tt}, v{a}, v{a+1}\nv_cvt_pk_bf16_f32 v{d+2*tt+1}, v{a+2}, v{a+3}")
        e(f"""buffer_store_dwordx4 {vr(d)}, v2, s[{S_WS}:{S_WS+3}], s22 offen sc1
        buffer_store_dwordx4 {vr(d+4)}, v2, s[{S_WS}:{S_WS+3}], s22 offen offset:1024 sc1
        buffer_store_dwordx2 {vr(d+8,2)}, v3, s[{S_WS}:{S_WS+3}], s23 offen sc1""")
        if s4 < 3: e(f"s_add_u32 s22, s22, 20480\ns_add_u32 s23, s23, 20480")
    e(f"""s_lshl_b32 s3, s{SB}, 2
    s_add_u32 s3, s3, s{AA}
    s_lshl_b32 s3, s3, 7
    s_add_u32 s92, s3, {FL_X}""")

SB2, GB = 55, 56
TF, YACC = 32, 96
def poll(e, c, addr, first_loaded):
    l1, l2 = e.lab("Lp"), e.lab("Lp")
    e("s_mov_b32 s91, 0")
    if not first_loaded: e(f"buffer_load_dword v29, v{addr}, s[{S_WS}:{S_WS+3}], 0 offen sc1\ns_waitcnt vmcnt(0)")
    e(f"""{l1}:
    v_cmp_ne_u32 vcc, s{NONCE}, v29
    s_add_u32 s91, s91, 1
    s_cmp_gt_u32 s91, 0x100000
    s_cbranch_scc1 L_end
    s_nop 1
    s_cbranch_vccz {l2}
    s_sleep {c.sleep}
    buffer_load_dword v29, v{addr}, s[{S_WS}:{S_WS+3}], 0 offen sc1
    s_waitcnt vmcnt(0)
    s_branch {l1}
    {l2}:""")

def phase2(e, c):
    e(f"""L_publish:
    s_and_b32 s{SB2}, s{X}, 1
    s_lshl_b32 s{SB2}, s{SB2}, 3
    s_and_b32 s3, s{I}, 7
    s_add_u32 s{SB2}, s{SB2}, s3
    s_lshr_b32 s{GB}, s{X}, 1
    s_lshl_b32 s{GB}, s{GB}, 2
    s_lshr_b32 s3, s{I}, 3
    s_add_u32 s{GB}, s{GB}, s3
    s_lshl_b32 s3, s{SB2}, 9
    s_add_u32 s3, s3, {FL_X}
    v_and_b32 v27, 3, v1
    v_lshlrev_b32 v27, 7, v27
    v_add_u32 v27, s3, v27
    buffer_load_dword v29, v27, s[{S_WS}:{S_WS+3}], 0 offen sc1
    s_mul_i32 s3, s{GB}, 96
    s_lshr_b32 s22, s3, 7
    s_add_u32 s3, s3, 95
    s_lshr_b32 s23, s3, 7
    s_lshl_b32 s22, s22, 11
    s_lshl_b32 s23, s23, 11
    s_sub_u32 s23, s23, s22
    s_add_u32 s22, s22, {FL_T}
    v_and_b32 v28, 1, v5
    v_mul_u32_u24 v28, s23, v28
    v_lshl_add_u32 v28, v4, 7, v28
    v_add_u32 v28, s22, v28
    v_lshlrev_b32 v2, 4, v1
    s_lshl_b32 s3, s{SB2}, 2
    s_add_u32 s3, s3, s{W}
    s_mul_i32 s58, s3, 40960
    s_add_u32 s58, s58, {WS_X}
    s_waitcnt vmcnt(0)""")
    stamp(e, c, 3)
    e("s_barrier")
    get_nonce_check(e, c)
    e(f"""s_cmp_lg_u32 s{W}, 0
    s_cbranch_scc1 L_noflag
    v_mov_b32 v25, s92
    s_mov_b64 exec, 1
    buffer_store_dword v31, v25, s[{S_WS}:{S_WS+3}], 0 offen sc1
    s_mov_b64 exec, -1
    L_noflag:""")
    poll(e, c, 27, True)
    stamp(e, c, 4)
    for n in range(40):
        if n % 4 == 0 and n: e("s_add_u32 s58, s58, 4096")
        e(f"buffer_load_dwordx4 {ar(4*n)}, v2, s[{S_WS}:{S_WS+3}], s58 offen offset:{1024*(n%4)} {c.ld_flag}")
    srd(e, S_OUT, 16, 2048*3072)
    e(f"""v_add_u32 v6, 19456, v2
    v_add_u32 v7, {2*19456}, v2
    v_add_u32 v8, 0x10000, v2
    s_and_b32 s3, s{W}, 1
    s_mul_i32 s22, s{GB}, 6
    s_mul_i32 s23, s3, 3
    s_add_u32 s22, s22, s23
    s_mul_i32 s59, s22, 20480
    s_lshr_b32 s22, s{W}, 1
    s_lshl_b32 s23, s22, 10
    s_add_u32 s59, s59, s23
    s_mul_i32 s60, s22, 6144
    s_mul_i32 s3, s3, 3072
    s_add_u32 s60, s60, s3
    s_mul_i32 s3, s{W}, 6656
    s_add_u32 s3, s3, 122880
    v_mul_u32_u24 v9, 208, v4
    v_lshl_add_u32 v9, v5, 3, v9
    v_add_u32 v9, s3, v9
    s_mov_b32 s22, 3072""")
    for n in range(3):
        e(f"""v_add_u32 v25, {64*n}, v1
        v_mul_u32_u24 v26, 5462, v25
        v_lshrrev_b32 v26, 16, v26
        v_mul_u32_u24 v27, 12, v26
        v_sub_u32 v27, v25, v27
        v_lshlrev_b32 v27, 4, v27
        v_mad_u32_u24 v{13+n}, v26, s22, v27
        v_mul_u32_u24 v26, 208, v26
        v_add3_u32 v{10+n}, v26, v27, s3""")
    e(f"""s_lshl_b32 s3, s{SB2}, 2
    s_add_u32 s3, s3, s{W}
    s_mul_i32 s61, s3, {32*3072}
    s_mul_i32 s3, s{GB}, 192
    s_add_u32 s61, s61, s3
    s_add_u32 s62, s61, 49152
    s_cmp_lg_u32 s{W}, 0
    s_cbranch_scc1 L_nopoll""")
    poll(e, c, 28, False)
    e("L_nopoll:\ns_barrier")
    stamp(e, c, 5)
    for p in range(10):
        e(f"s_add_u32 m0, s60, {p*12288}")
        e("s_nop 0" if p == 0 else "s_add_u32 s59, s59, 2048")
        for i3, v in enumerate((2, 6, 7)):
            e(f"buffer_load_dwordx4 v{v}, s[{S_WS}:{S_WS+3}], s59 offen offset:{1024*i3} {c.ld_flag} lds")
    chunks = [1, 1, 2, 2, 4]
    bar_at = {}; acc_p = 0
    for ch in chunks:
        bar_at[2*acc_p] = 3 * (10 - acc_p - ch); acc_p += ch
    rd = {}
    def bar(k):
        if k in bar_at:
            e(f"s_waitcnt vmcnt({bar_at[k]})\ns_barrier")
            if k == 0 and c.stamp:
                stamp(e, c, 6); e.drain()
    def read(k, g):
        off = (6*k + g) * 1024
        rd[k, g] = e.ds(f"ds_read_b128 {vr(TF+((k&1)*6+g)*4)}, v{2 if off < 65536 else 8} offset:{off & 65535}")
    bar(0)
    for g in range(6): read(0, g)
    for k in range(20):
        for g in range(6):
            for v in range(2):
                e.need(rd[k, g])
                acc = vr(YACC + (g*2+v)*4)
                e(f"v_mfma_f32_16x16x32_bf16 {acc}, {vr(TF+((k&1)*6+g)*4)}, {ar((20*v+k)*4)}, {acc if k else 0}")
                if k + 1 < 20:
                    if g == 0 and v == 0: bar(k + 1)
                    if v == 0: read(k + 1, g)
    if c.stamp: stamp(e, c, 7)
    e("s_nop 7")
    for v in range(2):
        for g in range(6):
            a = YACC + (g*2+v)*4; d = TF + (v*6+g)*2
            e(f"v_cvt_pk_bf16_f32 v{d}, v{a}, v{a+1}\nv_cvt_pk_bf16_f32 v{d+1}, v{a+2}, v{a+3}")
            e.ds(f"ds_write_b64 v9, {vr(d,2)} offset:{v*3328+g*32}")
    e.drain()
    r = []
    for h in range(2):
        for n in range(3): r.append(e.ds(f"ds_read_b128 {vr(64+(h*3+n)*4)}, v{10+n} offset:{h*3328}"))
    for h in range(2):
        for n in range(3):
            e.need(r[h*3+n])
            e(f"buffer_store_dwordx4 {vr(64+(h*3+n)*4)}, v{13+n}, s[{S_OUT}:{S_OUT+3}], s{61+h} offen {c.out_flag}")
    if c.stamp:
        stamp(e, c, 8); e("s_waitcnt vmcnt(0)"); stamp(e, c, 9); e("s_memtime s[86:87]\ns_waitcnt lgkmcnt(0)\ns_sub_u32 s84, s86, s84\ns_mov_b32 s86, s88")
        e(f"s_waitcnt lgkmcnt(0)\ns_lshl_b32 s3, s2, 2\ns_add_u32 s3, s3, s{W}\ns_lshl_b32 s3, s3, 6\ns_add_u32 s3, s3, {WS_ST}\nv_mov_b32 v2, s3\ns_mov_b64 exec, 1")
        for k in range(12): e(f"v_mov_b32 v{32+k}, s{64+2*k}")
        for k in range(3): e(f"buffer_store_dwordx4 {vr(32+4*k)}, v2, s[{S_WS}:{S_WS+3}], 0 offen offset:{16*k}")
    if c.amp:
        a, b, wg = map(int, c.amp.split(","))
        e(f"""s_cmp_lg_u32 s2, {wg}
        s_cbranch_scc1 L_end
        s_sub_u32 s3, s{64+2*b}, s{64+2*a}
        s_lshl_b32 s3, s3, 3
        s_min_u32 s3, s3, 100000
        L_amp:
        s_memrealtime s[22:23]
        s_waitcnt lgkmcnt(0)
        s_sub_u32 s22, s22, s82
        s_cmp_lt_u32 s22, s3
        s_cbranch_scc1 L_amp""")
    e("L_end:\ns_endpgm")

def generate(c):
    e = E()
    prologue(e, c); t_role(e, c); xr_role(e, c); phase2(e, c)
    head = open("standalone__weight_only_int_quip__prompt.s.ref").read().split("; Override")[0]
    return f"""{head}; y = (x U) (dequant(qw) V): 192 workgroups build T = Wq V, 64 build xr = x U, then all 256 compute y = xr T.
; @launch grid=(256,1,1) block=(256,1,1) lds=159744
.amdgcn_target "amdgcn-amd-amdhsa--gfx950"
.text
.globl {KN}
.p2align 8
.type {KN},@function
{KN}:
{e.text()}
.section .rodata,"a"
.p2align 6
.amdhsa_kernel {KN}
  .amdhsa_next_free_vgpr 416
  .amdhsa_next_free_sgpr 96
  .amdhsa_accum_offset 256
  .amdhsa_group_segment_fixed_size 0
  .amdhsa_kernarg_size 72
  .amdhsa_user_sgpr_count 2
  .amdhsa_user_sgpr_kernarg_segment_ptr 1
  .amdhsa_system_sgpr_workgroup_id_x 1
.end_amdhsa_kernel
"""
if __name__ == "__main__":
    c = Cfg()
    out = sys.argv[1]
    for kv in sys.argv[2:]:
        k, v = kv.split("=")
        setattr(c, k, type(getattr(c, k))(int(v)) if isinstance(getattr(c, k), (bool, int)) else v.replace("_", " "))
    open(out, "w").write(generate(c))
```

```python
import sys
from gen import E, vr, ar, srd, KN
WS_T, WS_X, WS_W, FL_T, FL_X, FL_W, WS_ST = 0, 0x200000, 0x480000, 0x680000, 0x690000, 0x6a0000, 0x6c0000
WS_SIZE = 0x700000
class Cfg:
    stamp = False
    out_flag = ""
    sleep = 1
    ld_flag = "sc1"
    amp = ""
    early = 0
    prio = 0
S_A, S_B, S_C, S_D, S_WS, S_OUT, S_DBG = 24, 28, 32, 36, 40, 44, 48
W, X, I, LW = 52, 53, 54, 55
J, GBK, AA, SB = 56, 57, 56, 57
SB2, GB, FLAG, NONCE = 93, 94, 92, 90
def R(n, k=4): return ar(n, k) if n < 144 else vr(n - 48, k)
def sr(d): return f"s[{d}:{d+3}]"
def stamp(e, c, k):
    if c.stamp: e(f"s_memrealtime s[{64+2*k}:{65+2*k}]")

def nonce_issue(e): e(f"v_mov_b32 v21, 0\nbuffer_load_dword v20, v21, {sr(S_DBG)}, 0 offen sc1")
def nonce_check(e):
    l1, l2 = e.lab("Lnon"), e.lab("Lnon")
    e(f"""s_mov_b32 s91, 0
    {l1}:
    v_readfirstlane_b32 s{NONCE}, v20
    s_add_u32 s91, s91, 1
    s_cmp_lg_u32 s{NONCE}, 0
    s_cbranch_scc1 {l2}
    s_cmp_gt_u32 s91, 0x100000
    s_cbranch_scc1 L_end
    buffer_load_dword v20, v21, {sr(S_DBG)}, 0 offen sc1
    s_waitcnt vmcnt(0)
    s_branch {l1}
    {l2}:""")
def flag_store(e):
    e(f"""v_mov_b32 v21, s{FLAG}
    s_mov_b64 exec, 1
    buffer_store_dword v20, v21, {sr(S_WS)}, 0 offen sc1
    s_mov_b64 exec, -1""")
def poll(e, c, addr, loaded=False):
    l1, l2 = e.lab("Lp"), e.lab("Lp")
    ld = f"buffer_load_dwordx4 v[16:19], v{addr}, {sr(S_WS)}, 0 offen sc1\ns_waitcnt vmcnt(0)"
    e("s_mov_b32 s91, 0")
    if not loaded: e(ld)
    e(f"""{l1}:
    v_xor_b32 v16, s{NONCE}, v16
    v_xor_b32 v17, s{NONCE}, v17
    v_xor_b32 v18, s{NONCE}, v18
    v_xor_b32 v19, s{NONCE}, v19
    v_or3_b32 v16, v16, v17, v18
    v_or_b32 v16, v16, v19
    v_cmp_ne_u32 vcc, 0, v16
    s_add_u32 s91, s91, 1
    s_cmp_gt_u32 s91, 0x100000
    s_cbranch_scc1 L_end
    s_nop 1
    s_cbranch_vccz {l2}
    s_sleep {c.sleep}
    {ld}
    s_branch {l1}
    {l2}:""")

def prologue(e, c):
    stamp(e, c, 0)
    if c.stamp: e("s_memtime s[84:85]")
    e(f"""s_cmp_ge_u32 s2, 256
    s_cbranch_scc1 L_end
    s_load_dwordx16 s[4:19], s[0:1], 0
    s_load_dwordx2 s[20:21], s[0:1], 64
    v_lshrrev_b32 v2, 6, v0
    v_and_b32 v1, 63, v0
    v_readfirstlane_b32 s{W}, v2
    s_and_b32 s{X}, s2, 7
    s_lshr_b32 s{I}, s2, 3
    v_and_b32 v4, 15, v1
    v_lshrrev_b32 v5, 4, v1
    s_and_b32 s{LW}, s{W}, 3
    s_and_b32 s{SB2}, s{X}, 1
    s_lshl_b32 s{SB2}, s{SB2}, 3
    s_and_b32 s3, s{I}, 7
    s_add_u32 s{SB2}, s{SB2}, s3
    s_lshr_b32 s{GB}, s{X}, 1
    s_lshl_b32 s{GB}, s{GB}, 2
    s_lshr_b32 s3, s{I}, 3
    s_add_u32 s{GB}, s{GB}, s3
    s_cmp_lt_u32 s{I}, 8
    s_cbranch_scc1 L_idx_x
    s_sub_u32 s3, s{I}, 8
    s_and_b32 s{J}, s{X}, 1
    s_lshl_b32 s{J}, s{J}, 2
    s_and_b32 s22, s3, 3
    s_add_u32 s{J}, s{J}, s22
    s_lshr_b32 s{GBK}, s{X}, 1
    s_mul_i32 s{GBK}, s{GBK}, 6
    s_lshr_b32 s3, s3, 2
    s_add_u32 s{GBK}, s{GBK}, s3
    s_branch L_idx_done
    L_idx_x:
    s_and_b32 s{AA}, s{I}, 3
    s_lshr_b32 s3, s{I}, 2
    s_lshl_b32 s{SB}, s{X}, 1
    s_add_u32 s{SB}, s{SB}, s3
    L_idx_done:
    s_cmp_ge_u32 s{W}, 4
    s_waitcnt lgkmcnt(0)""")
    srd(e, S_DBG, 18, 256); srd(e, S_WS, 20, WS_SIZE)
    e("s_cbranch_scc1 L_loader")

def dequant(e, c):
    if c.prio: e(f"s_setprio {c.prio}")
    e("s_cmp_ge_u32 s2, 240\ns_cbranch_scc1 L_dq_skip")
    srd(e, S_A, 6, 640*6144); srd(e, S_C, 8, 15360); srd(e, S_D, 10, 15360)
    e(f"""s_mul_i32 s22, s2, 10923
    s_lshr_b32 s22, s22, 16
    s_mul_i32 s3, s22, 6
    s_sub_u32 s23, s2, s3
    s_lshl_b32 s23, s23, 2
    s_add_u32 s23, s23, s{W}
    v_lshrrev_b32 v2, 2, v1
    v_sub_u32 v3, 4, v5
    v_xor_b32 v3, v3, v1
    v_and_b32 v3, 3, v3
    s_mov_b32 s3, 6144
    v_lshlrev_b32 v6, 4, v3
    v_mad_u32_u24 v6, v2, s3, v6
    s_mul_i32 s58, s22, {16*6144}
    s_lshl_b32 s3, s23, 8
    s_add_u32 s58, s58, s3
    v_lshlrev_b32 v7, 3, v3
    s_lshr_b32 s59, s22, 3
    s_mul_i32 s59, s59, 3072
    s_lshl_b32 s3, s23, 7
    s_add_u32 s59, s59, s3""")
    for jj in range(4): e(f"buffer_load_dwordx4 {vr(24+4*jj)}, v6, {sr(S_A)}, s58 offen offset:{64*jj}")
    for jj in range(4):
        e(f"buffer_load_dwordx2 {vr(40+2*jj,2)}, v7, {sr(S_C)}, s59 offen offset:{32*jj}")
        e(f"buffer_load_dwordx2 {vr(48+2*jj,2)}, v7, {sr(S_D)}, s59 offen offset:{32*jj}")
    e(f"""s_mul_i32 s58, s22, 49152
    s_lshl_b32 s3, s23, 11
    s_add_u32 s58, s58, s3
    s_add_u32 s58, s58, {WS_W}
    s_lshl_b32 s{FLAG}, s2, 7
    s_lshl_b32 s3, s{W}, 2
    s_add_u32 s{FLAG}, s{FLAG}, s3
    s_add_u32 s{FLAG}, s{FLAG}, {FL_W}
    v_lshlrev_b32 v2, 4, v1
    s_cmp_lt_u32 s{I}, 8
    s_waitcnt vmcnt(0)
    s_cbranch_scc1 L_dq_nobar
    s_barrier
    L_dq_nobar:""")
    stamp(e, c, 1)
    for jj in range(4):
        s, z, q, t = 40+2*jj, 48+2*jj, 24+4*jj, 56+8*(jj & 1)
        e(f"""v_lshlrev_b32 v{t}, 16, v{s}
        v_and_b32 v{t+1}, 0xffff0000, v{s}
        v_lshlrev_b32 v{t+2}, 16, v{s+1}
        v_and_b32 v{t+3}, 0xffff0000, v{s+1}
        v_lshlrev_b32 v{t+4}, 16, v{z}
        v_and_b32 v{t+5}, 0xffff0000, v{z}
        v_lshlrev_b32 v{t+6}, 16, v{z+1}
        v_and_b32 v{t+7}, 0xffff0000, v{z+1}""")
        for k in range(4): e(f"v_cvt_f32_i32 v{q+k}, v{q+k}")
        for k in range(4): e(f"v_sub_f32 v{q+k}, v{q+k}, v{t+4+k}")
        for k in range(4): e(f"v_mul_f32 v{q+k}, v{q+k}, v{t+k}")
        for k in range(2): e(f"v_cvt_pk_bf16_f32 v{72+2*jj+k}, v{q+2*k}, v{q+2*k+1}")
        if jj & 1: e(f"buffer_store_dwordx4 {vr(72+2*(jj-1))}, v2, {sr(S_WS)}, s58 offen offset:{512*(jj-1)} sc1")
    nonce_issue(e)
    e("s_waitcnt vmcnt(0)")
    nonce_check(e); flag_store(e)
    e(f"""s_branch L_dq_done
    L_dq_skip:
    s_barrier""")
    nonce_issue(e); e("s_waitcnt vmcnt(0)"); nonce_check(e)
    e(f"L_dq_done:")
    stamp(e, c, 2)
    e(f"s_cmp_lt_u32 s{I}, 8\ns_cbranch_scc1 L_xr_c")

TA, TACC = 24, 44
def t_compute(e, c):
    e(f"""s_lshr_b32 s22, s{W}, 1
    s_and_b32 s23, s{W}, 1
    v_lshrrev_b32 v2, 2, v4
    v_and_b32 v3, 1, v5
    v_lshrrev_b32 v6, 1, v2
    v_lshl_add_u32 v3, v3, 1, v6
    v_lshlrev_b32 v3, 1, v3
    v_bfe_u32 v6, v1, 1, 1
    s_lshl_b32 s3, s23, 2
    s_lshl_b32 s58, s22, 1
    s_add_u32 s3, s3, s58
    v_add_u32 v6, s3, v6
    v_xor_b32 v6, v6, v3
    v_lshlrev_b32 v6, 4, v6
    v_and_b32 v3, 1, v1
    v_lshl_add_u32 v6, v3, 3, v6
    v_lshl_add_u32 v2, v5, 2, v2
    v_lshl_add_u32 v6, v2, 7, v6
    s_lshl_b32 s3, s22, 12
    v_add_u32 v6, s3, v6
    v_xor_b32 v7, 32, v6
    v_add_u32 v8, 0x10000, v6
    v_add_u32 v9, 0x10000, v7
    v_add_u32 v10, 0x20000, v6
    v_add_u32 v11, 0x20000, v7
    v_lshrrev_b32 v2, 2, v4
    v_sub_u32 v2, 4, v2
    v_xor_b32 v2, v2, v5
    v_and_b32 v2, 3, v2
    v_lshl_add_u32 v2, v4, 2, v2
    v_lshlrev_b32 v2, 4, v2
    s_mul_i32 s3, s22, 5120
    s_add_u32 s3, s3, 32768
    v_add_u32 v12, s3, v2
    v_add_u32 v13, 61440, v12""")
    def bread(slot, bank):
        last = {}
        for s2 in range(2):
            for u in range(2):
                for h in range(2):
                    off = slot*16384 + s2*8192 + h*2048
                    last[s2, u] = e.ds(f"ds_read_b64_tr_b16 {R(bank*16+s2*8+u*4+2*h, 2)}, v{6+u+2*(off>>16)} offset:{off & 65535}")
        return last
    e("s_barrier")
    for ch in (0, 1): bread(ch, ch)
    e.drain(); e("s_barrier\ns_barrier")
    for ch in range(2, 6): bread(ch, ch)
    e("s_barrier")
    for ch in range(6, 10): bread(ch, ch)
    e.drain(); e("s_barrier")
    stamp(e, c, 3)
    e("s_barrier")
    rd = {}
    def aread(n, t):
        ch, s2 = n >> 1, n & 1
        r = ch % 6
        off = (r % 3)*20480 + s2*10240 + t*1024
        rd[n, t] = e.ds(f"ds_read_b128 {vr(TA+4*t)}, v{12 + r//3} offset:{off}")
    for t in range(5): aread(0, t)
    bl = {}
    for n in range(24):
        ch, s2 = n >> 1, n & 1
        bank = ch if ch < 10 else ch - 10
        for t in range(5):
            for u in range(2):
                e.need(rd[n, t])
                if ch >= 10: e.need(bl[ch][s2, u])
                acc = vr(TACC + (t*2+u)*4)
                e(f"v_mfma_f32_16x16x32_bf16 {acc}, {vr(TA+4*t)}, {R(bank*16+s2*8+u*4)}, {acc if n else 0}")
            if n < 23:
                if s2 == 1 and t == 0: e("s_barrier")
                aread(n+1, t)
            if n in (16, 18) and t == 2: bl[10 + (n-16)//2] = bread((n-16)//2, (n-16)//2)
    stamp(e, c, 4)
    e(f"""s_mul_i32 s3, s{W}, 5120
    s_add_u32 s3, s3, 32768
    v_lshlrev_b32 v2, 4, v1
    v_add_u32 v6, s3, v2
    s_xor_b32 s3, s{W}, 2
    s_mul_i32 s3, s3, 5120
    s_add_u32 s3, s3, 32768
    v_add_u32 v7, s3, v2
    v_lshlrev_b32 v3, 3, v1""")
    for t in range(5): e.ds(f"ds_write_b128 v6, {vr(TACC+(t*2+1)*4)} offset:{1024*t}")
    e(f"""s_lshl_b32 s3, s{GBK}, 2
    s_lshl_b32 s23, s23, 1
    s_add_u32 s3, s3, s23
    s_add_u32 s3, s3, s22
    s_mul_i32 s3, s3, 20480
    s_lshl_b32 s58, s{J}, 11
    s_add_u32 s58, s58, s3
    s_lshr_b32 s59, s{J}, 1
    s_add_u32 s59, s59, 16
    s_lshl_b32 s59, s59, 10
    s_add_u32 s59, s59, s3
    s_and_b32 s3, s{J}, 1
    s_lshl_b32 s3, s3, 9
    s_add_u32 s59, s59, s3
    s_lshl_b32 s3, s{GBK}, 3
    s_add_u32 s3, s3, s{J}
    s_lshl_b32 s3, s3, 5
    s_add_u32 s3, s3, s{W}
    s_lshl_b32 s3, s3, 2
    s_add_u32 s{FLAG}, s3, {FL_T}""")
    e.drain(); e("s_barrier")
    r = [e.ds(f"ds_read_b128 {vr(TA+4*t)}, v7 offset:{1024*t}") for t in range(5)]
    for t in range(5):
        e.need(r[t])
        a = TACC + t*8
        for k in range(4): e(f"v_add_f32 v{a+k}, v{a+k}, v{TA+4*t+k}")
        e(f"v_cvt_pk_bf16_f32 v{84+2*t}, v{a}, v{a+1}\nv_cvt_pk_bf16_f32 v{85+2*t}, v{a+2}, v{a+3}")
        if t == 1: e(f"buffer_store_dwordx4 v[84:87], v2, {sr(S_WS)}, s58 offen sc1")
        if t == 3: e(f"buffer_store_dwordx4 v[88:91], v2, {sr(S_WS)}, s58 offen offset:1024 sc1")
        if t == 4: e(f"buffer_store_dwordx2 v[92:93], v3, {sr(S_WS)}, s59 offen sc1")
    e("s_branch L_p2_c")

XACC = 24
def xr_compute(e, c):
    e(f"""L_xr_c:
    s_and_b32 s23, s{W}, 1
    s_lshr_b32 s22, s{W}, 1
    s_mul_i32 s3, s23, 160
    v_and_b32 v2, 3, v1
    v_lshrrev_b32 v3, 2, v4
    v_lshl_add_u32 v3, v5, 3, v3
    v_mul_u32_u24 v3, 320, v3
    v_add_u32 v3, 16384, v3
    v_and_b32 v21, 1, v5
    v_lshlrev_b32 v21, 5, v21
    v_lshlrev_b32 v2, 3, v2
    v_add_u32 v2, s3, v2""")
    for tt in range(5): e(f"v_add_u32 v16, {32*tt}, v2\nv_xor_b32 v16, v16, v21\nv_add_u32 v{6+tt}, v16, v3")
    e(f"""v_lshrrev_b32 v2, 1, v4
    v_xor_b32 v2, v2, v5
    v_lshlrev_b32 v2, 4, v2
    v_lshl_add_u32 v2, v4, 7, v2
    s_lshl_b32 s3, s22, 13
    v_add_u32 v11, s3, v2
    v_xor_b32 v12, 64, v11
    s_mov_b32 s58, 0
    s_mov_b32 s59, 0""")
    for k in range(80): e(f"v_mov_b32 v{XACC+k}, 0")
    cur = [13, 14, 15, 104, 105, 106, 107]
    rd = {}
    def rq(sl):
        q = []
        for tt in range(5):
            for h in range(2):
                q.append(lambda tt=tt, h=h: rd.__setitem__((sl, "a", tt), e.ds(f"ds_read_b64_tr_b16 {ar(sl*36+tt*4+2*h,2)}, v{cur[tt]} offset:{(32*sl+4*h)*320}")))
            if tt < 4: q.append(lambda tt=tt: rd.__setitem__((sl, "b", tt), e.ds(f"ds_read_b128 {ar(sl*36+20+tt*4)}, v{cur[5+sl]} offset:{tt*2048}")))
        return q
    def setslot():
        for k in range(7): e(f"v_add_u32 v{cur[k]}, s58, v{6+k}")
        e(f"s_add_u32 s58, s58, 36864\ns_cmp_eq_u32 s58, {4*36864}\ns_cselect_b32 s58, 0, s58")
    order = sorted([(tt, s4) for tt in range(5) for s4 in range(4)], key=lambda p: (max(p), p))
    e("s_barrier"); setslot()
    for f in rq(0): f()
    stamp(e, c, 3)
    e.drain()
    e("L_xloop:")
    for sl in range(2):
        q = rq(1 - sl)
        for n, (tt, s4) in enumerate(order):
            e.need(max(rd[sl, "a", tt], rd[sl, "b", s4]))
            acc = vr(XACC + (tt*4+s4)*4)
            e(f"v_mfma_f32_16x16x32_bf16 {acc}, {ar(sl*36+tt*4)}, {ar(sl*36+20+s4*4)}, {acc}")
            if sl == 1 and n == 0: e("s_barrier"); setslot()
            if n >= 1 and q: q.pop(0)()
        assert not q
    e(f"s_add_u32 s59, s59, 1\ns_cmp_lt_u32 s59, 10")
    e.drain()
    e("s_cbranch_scc1 L_xloop")
    stamp(e, c, 4)
    e(f"""s_lshl_b32 s3, s{SB}, 1
    s_add_u32 s3, s3, s22
    s_mul_i32 s3, s3, 81920
    s_add_u32 s3, s3, {WS_X}
    s_lshl_b32 s58, s{AA}, 1
    s_add_u32 s58, s58, s23
    s_lshl_b32 s58, s58, 11
    s_add_u32 s58, s58, s3
    s_add_u32 s59, s{AA}, 16
    s_lshl_b32 s59, s59, 10
    s_add_u32 s59, s59, s3
    s_lshl_b32 s3, s23, 9
    s_add_u32 s59, s59, s3
    v_lshlrev_b32 v2, 4, v1
    v_lshlrev_b32 v3, 3, v1
    s_lshl_b32 s3, s{SB}, 2
    s_add_u32 s3, s3, s{AA}
    s_lshl_b32 s3, s3, 5
    s_add_u32 s3, s3, s{W}
    s_lshl_b32 s3, s3, 2
    s_add_u32 s{FLAG}, s3, {FL_X}""")
    for s4 in range(4):
        dd = [list(range(6, 16)), list(range(104, 112)) + [16, 17], None, None][s4]
        if s4 >= 2:
            b = lambda tt: XACC + (tt*4 + s4 - 2)*4
            dd = [b(0), b(0)+1, b(0)+2, b(0)+3, b(1), b(1)+1, b(1)+2, b(1)+3, b(2), b(2)+1]
        for tt in range(5):
            a = XACC + (tt*4+s4)*4
            e(f"v_cvt_pk_bf16_f32 v{dd[2*tt]}, v{a}, v{a+1}\nv_cvt_pk_bf16_f32 v{dd[2*tt+1]}, v{a+2}, v{a+3}")
        e(f"""buffer_store_dwordx4 {vr(dd[0])}, v2, {sr(S_WS)}, s58 offen sc1
        buffer_store_dwordx4 {vr(dd[4])}, v2, {sr(S_WS)}, s58 offen offset:1024 sc1
        buffer_store_dwordx2 {vr(dd[8],2)}, v3, {sr(S_WS)}, s59 offen sc1""")
        if s4 < 3: e(f"s_add_u32 s58, s58, 20480\ns_add_u32 s59, s59, 20480")

PF, YACC = 24, 48
CH = [1, 1, 2, 2, 4]
def p2_compute(e, c):
    e(f"""L_p2_c:
    s_barrier
    s_lshl_b32 s3, s{SB2}, 9
    s_add_u32 s3, s3, {FL_X}
    v_and_b32 v22, 3, v1
    v_lshlrev_b32 v22, 7, v22
    v_add_u32 v22, s3, v22
    buffer_load_dwordx4 v[16:19], v22, {sr(S_WS)}, 0 offen sc1
    s_lshl_b32 s3, s{SB2}, 2
    s_add_u32 s3, s3, s{W}
    s_mul_i32 s58, s3, 40960
    s_add_u32 s58, s58, {WS_X}
    s_add_u32 s59, s58, 20480
    s_mul_i32 s61, s3, {32*3072}
    s_mul_i32 s3, s{GB}, 192
    s_add_u32 s61, s61, s3
    s_add_u32 s62, s61, 49152
    s_waitcnt vmcnt(0)""")
    flag_store(e)
    stamp(e, c, 5)
    poll(e, c, 22, True)
    nld = {}
    cnt = 0
    for k in range(20):
        if k % 4 == 0 and k: e("s_add_u32 s58, s58, 4096\ns_add_u32 s59, s59, 4096")
        for v in range(2):
            n = (20*v + k) * 4
            if k < 16:
                e(f"buffer_load_dwordx4 {R(n)}, v2, {sr(S_WS)}, s{58+v} offen offset:{1024*(k%4)} {c.ld_flag}"); cnt += 1
            else:
                for h in range(2):
                    e(f"buffer_load_dwordx2 {R(n+2*h,2)}, v3, {sr(S_WS)}, s{58+v} offen offset:{1024*(k%4)+512*h} {c.ld_flag}"); cnt += 1
        nld[k] = cnt
    srd(e, S_OUT, 16, 2048*3072)
    e(f"""v_add_u32 v8, 0x10000, v2
    v_add_u32 v7, 0x10000, v3
    s_mul_i32 s3, s{W}, 6656
    s_add_u32 s3, s3, 122880
    v_mul_u32_u24 v9, 208, v4
    v_lshl_add_u32 v9, v5, 3, v9
    v_add_u32 v9, s3, v9
    s_mov_b32 s22, 3072""")
    for n in range(3):
        e(f"""v_add_u32 v16, {64*n}, v1
        v_mul_u32_u24 v17, 5462, v16
        v_lshrrev_b32 v17, 16, v17
        v_mul_u32_u24 v18, 12, v17
        v_sub_u32 v18, v16, v18
        v_lshlrev_b32 v18, 4, v18
        v_mad_u32_u24 v{13+n}, v17, s22, v18
        v_mul_u32_u24 v17, 208, v17
        v_add3_u32 v{10+n}, v17, v18, s3""")
    bar = {}; p = 0
    for ch in CH: bar[2*p] = 2*(p + ch) - 1; p += ch
    rd = {}
    def read(k, g):
        off = (6*k + g) * 1024
        if k < 16: rd[k, g] = e.ds(f"ds_read_b128 {vr(PF+4*g)}, v{2 if off < 65536 else 8} offset:{off & 65535}")
        else:
            for h in range(2): rd[k, g] = e.ds(f"ds_read_b64 {vr(PF+4*g+2*h,2)}, v7 offset:{off - 65536 + 512*h}")
    stamp(e, c, 6)
    e("s_barrier")
    for g in range(6): read(0, g)
    for k in range(20):
        if k in bar: e(f"s_waitcnt vmcnt({cnt - nld[bar[k]]})")
        if k == 0: stamp(e, c, 7)
        for g in range(6):
            for v in range(2):
                e.need(rd[k, g])
                acc = vr(YACC + (g*2+v)*4)
                e(f"v_mfma_f32_16x16x32_bf16 {acc}, {vr(PF+4*g)}, {R((20*v+k)*4)}, {acc if k else 0}")
            if k < 19:
                if g == 0 and k + 1 in bar: e("s_barrier")
                read(k + 1, g)
    stamp(e, c, 8)
    e("s_nop 4")
    for v in range(2):
        for g in range(6):
            a = YACC + (g*2+v)*4; d = PF + (v*6+g)*2
            e(f"v_cvt_pk_bf16_f32 v{d}, v{a}, v{a+1}\nv_cvt_pk_bf16_f32 v{d+1}, v{a+2}, v{a+3}")
            e.ds(f"ds_write_b64 v9, {vr(d,2)} offset:{v*3328+g*32}")
    e.drain()
    r = []
    for h in range(2):
        for n in range(3): r.append(e.ds(f"ds_read_b128 {vr(YACC+(h*3+n)*4)}, v{10+n} offset:{h*3328}"))
    for h in range(2):
        for n in range(3):
            e.need(r[h*3+n])
            e(f"buffer_store_dwordx4 {vr(YACC+(h*3+n)*4)}, v{13+n}, {sr(S_OUT)}, s{61+h} offen {c.out_flag}")
    e("s_branch L_fin")

def loader(e, c):
    e(f"""L_loader:
    s_or_b32 s3, s2, s{LW}
    s_cmp_lg_u32 s3, 0
    s_cbranch_scc1 L_nononce
    s_memrealtime s[22:23]
    v_mov_b32 v2, 0
    s_waitcnt lgkmcnt(0)
    s_or_b32 s22, s22, 1
    v_mov_b32 v3, s22
    s_mov_b64 exec, 1
    buffer_store_dword v3, v2, {sr(S_DBG)}, 0 offen sc1
    s_mov_b64 exec, -1
    L_nononce:
    v_and_b32 v2, 7, v1
    v_lshrrev_b32 v3, 3, v1
    s_cmp_lt_u32 s{I}, 8
    s_cbranch_scc1 L_xr_l""")
    srd(e, S_B, 14, 1536*3072)
    e(f"""s_mov_b32 s3, 3072
    v_lshlrev_b32 v16, 1, v5
    v_xor_b32 v16, v16, v2
    v_lshlrev_b32 v16, 4, v16
    v_mad_u32_u24 v6, v3, s3, v16
    v_add_u32 v7, {24576-1024}, v6
    v_add_u32 v8, {2*(24576-1024)}, v6
    v_add_u32 v9, {3*(24576-1024)}, v6
    s_mul_i32 s58, s{LW}, {32*3072}
    s_lshl_b32 s3, s{GBK}, 7
    s_add_u32 s58, s58, s3
    s_lshl_b32 s60, s{LW}, 12""")
    def vchunk(ch):
        e(f"s_add_u32 m0, s60, {(ch % 10)*16384}")
        e("s_nop 0" if ch == 0 else f"s_add_u32 s58, s58, {128*3072}")
        for n in range(4): e(f"buffer_load_dwordx4 v{6+n}, {sr(S_B)}, s58 offen offset:{1024*n} lds")
    for ch in range(c.early): vchunk(ch)
    e(f"""v_lshlrev_b32 v10, 4, v1
    v_add_u32 v11, {49152-1024}, v10
    v_add_u32 v12, {2*(49152-1024)}, v10
    v_add_u32 v13, {3*(49152-1024)}, v10
    v_add_u32 v14, {4*49152}, v10
    s_mul_i32 s59, s{J}, {5*49152}
    s_lshl_b32 s3, s{LW}, 10
    s_add_u32 s59, s59, s3
    s_add_u32 s59, s59, {WS_W}
    s_mul_i32 s61, s{LW}, 5120
    s_add_u32 s61, s61, 32768
    s_mul_i32 s3, s{J}, {30*128}
    s_add_u32 s3, s3, {FL_W}
    v_min_u32 v22, 29, v1
    v_lshlrev_b32 v22, 7, v22
    v_add_u32 v22, s3, v22
    s_barrier""")
    stamp(e, c, 1)
    for ch in range(c.early, 9): vchunk(ch)
    e("s_waitcnt vmcnt(28)\ns_barrier")
    vchunk(9)
    e("s_barrier")
    vchunk(10); vchunk(11)
    nonce_issue(e)
    stamp(e, c, 2)
    e("s_waitcnt vmcnt(25)\ns_barrier")
    e("s_waitcnt vmcnt(9)\ns_barrier")
    e("s_waitcnt vmcnt(0)")
    stamp(e, c, 3)
    nonce_check(e)
    poll(e, c, 22)
    stamp(e, c, 4)
    e("s_barrier")
    def achunk(ch):
        e(f"s_add_u32 m0, s61, {(ch % 6)*20480}")
        e("s_nop 0" if ch == 0 else "s_add_u32 s59, s59, 4096")
        for t in range(4): e(f"buffer_load_dwordx4 v{10+t}, {sr(S_WS)}, s59 offen offset:{1024*t} {c.ld_flag} lds")
        e(f"s_add_u32 m0, s61, {(ch % 6)*20480+4096}\ns_nop 0")
        e(f"buffer_load_dwordx4 v14, {sr(S_WS)}, s59 offen {c.ld_flag} lds")
    for ch in range(4): achunk(ch)
    for ch in range(12):
        e(f"s_waitcnt vmcnt({5*min(3, 11-ch)})\ns_barrier")
        if ch == 0: stamp(e, c, 5)
        if ch + 4 < 12: achunk(ch + 4)
    e("s_barrier\ns_branch L_p2_l")
    e("L_xr_l:")
    srd(e, S_A, 4, 2048*1280); srd(e, S_B, 12, 640*1280)
    e(f"""s_lshl_b32 s3, s{SB}, 2
    s_add_u32 s3, s3, s{LW}
    s_mul_i32 s58, s3, {32*1280}
    s_mul_i32 s59, s{LW}, {16*1280}
    s_mul_i32 s3, s{AA}, 320
    s_add_u32 s59, s59, s3
    s_lshl_b32 s60, s{LW}, 12
    s_mul_i32 s61, s{LW}, 5120
    s_add_u32 s61, s61, 16384
    s_mov_b32 s23, 1280
    v_xor_b32 v16, v2, v5
    v_lshlrev_b32 v16, 4, v16
    v_mad_u32_u24 v6, v3, s23, v16
    v_xor_b32 v16, 64, v16
    v_mad_u32_u24 v7, v3, s23, v16
    v_add_u32 v7, {10240-1024}, v7
    v_add_u32 v8, {2*(10240-1024)}, v6
    v_add_u32 v9, {2*(10240-1024)}, v7""")
    def xpart(st):
        e(f"s_add_u32 m0, s60, {(st % 4)*36864}")
        e("s_nop 0" if st == 0 else "s_add_u32 s58, s58, 128")
        for n in range(4): e(f"buffer_load_dwordx4 v{6+n}, {sr(S_A)}, s58 offen offset:{1024*n} lds")
    def upart(st):
        e(f"s_add_u32 m0, s61, {(st % 4)*36864}")
        e("s_nop 0" if st == 0 else f"s_add_u32 s59, s59, {64*1280}")
        for n in range(4): e(f"buffer_load_dwordx4 v{10+n}, {sr(S_B)}, s59 offen offset:{1024*n} lds")
        e(f"s_add_u32 m0, s61, {(st % 4)*36864+4096}\ns_nop 0")
        e(f"buffer_load_dwordx4 v14, {sr(S_B)}, s59 offen lds")
    xpart(0)
    for n in range(5):
        e(f"""v_add_u32 v16, {64*n}, v1
        v_mul_u32_u24 v17, 3277, v16
        v_lshrrev_b32 v17, 16, v17
        v_mul_u32_u24 v18, 20, v17
        v_sub_u32 v18, v16, v18
        v_lshrrev_b32 v16, 3, v17
        v_lshlrev_b32 v16, 1, v16
        v_xor_b32 v18, v18, v16
        v_lshlrev_b32 v18, 4, v18
        v_mad_u32_u24 v{10+n}, v17, s23, v18""")
        if 0 < n < 4: e(f"v_subrev_u32 v{10+n}, {1024*n}, v{10+n}")
    upart(0)
    for st in (1, 2): xpart(st); upart(st)
    nxt = 3
    for st in range(11):
        if st < 10: e(f"s_waitcnt vmcnt({9*(nxt-1-st)})")
        e("s_barrier")
        if st == 0: stamp(e, c, 1)
        while nxt < 10 and nxt <= max(3, st + 2): xpart(nxt); upart(nxt); nxt += 1
    nonce_issue(e); e("s_waitcnt vmcnt(0)"); nonce_check(e)
    e(f"""L_p2_l:
    s_mul_i32 s3, s{GB}, 3
    s_lshr_b32 s3, s3, 1
    s_lshl_b32 s3, s3, 10
    s_add_u32 s3, s3, {FL_T}
    v_lshlrev_b32 v22, 7, v4
    v_add_u32 v22, s3, v22
    v_lshlrev_b32 v2, 4, v1
    v_add_u32 v6, 19456, v2
    v_add_u32 v7, {2*19456}, v2
    s_and_b32 s3, s{LW}, 1
    s_mul_i32 s22, s{GB}, 6
    s_mul_i32 s23, s3, 3
    s_add_u32 s22, s22, s23
    s_mul_i32 s59, s22, 20480
    s_lshr_b32 s22, s{LW}, 1
    s_lshl_b32 s23, s22, 10
    s_add_u32 s59, s59, s23
    s_mul_i32 s60, s22, 6144
    s_mul_i32 s3, s3, 3072
    s_add_u32 s60, s60, s3
    s_barrier""")
    stamp(e, c, 6)
    poll(e, c, 22)
    stamp(e, c, 7)
    def pair(p):
        e(f"s_add_u32 m0, s60, {p*12288}")
        e("s_nop 0" if p == 0 else "s_add_u32 s59, s59, 2048")
        for i3, v in enumerate((2, 6, 7)): e(f"buffer_load_dwordx4 v{v}, {sr(S_WS)}, s59 offen offset:{1024*i3} {c.ld_flag} lds")
    issued = 0; done = 0
    for ci, ch in enumerate(CH):
        tgt = min(10, 4 + 2*ci)
        while issued < tgt: pair(issued); issued += 1
        done += ch
        e(f"s_waitcnt vmcnt({3*(issued-done)})\ns_barrier")
        if ci == 0: stamp(e, c, 8)

def fin(e, c):
    e("L_fin:")
    if c.stamp:
        e("s_waitcnt vmcnt(0)"); stamp(e, c, 9); e("s_memtime s[86:87]\ns_waitcnt lgkmcnt(0)\ns_sub_u32 s84, s86, s84")
        e(f"s_lshl_b32 s3, s2, 3\ns_add_u32 s3, s3, s{W}\ns_lshl_b32 s3, s3, 6\ns_add_u32 s3, s3, {WS_ST}\nv_mov_b32 v2, s3\ns_mov_b64 exec, 1")
        for k in range(12): e(f"v_mov_b32 v{32+k}, s{64+2*k}")
        for k in range(3): e(f"buffer_store_dwordx4 {vr(32+4*k)}, v2, {sr(S_WS)}, 0 offen offset:{16*k}")
    if c.amp:
        a, b, wg, wv = map(int, c.amp.split(","))
        e(f"""s_cmp_lg_u32 s2, {wg}
        s_cbranch_scc1 L_end
        s_cmp_lg_u32 s{W}, {wv}
        s_cbranch_scc1 L_end
        s_sub_u32 s3, s{64+2*b}, s{64+2*a}
        s_lshl_b32 s3, s3, 3
        s_min_u32 s3, s3, 100000
        L_amp:
        s_memrealtime s[22:23]
        s_waitcnt lgkmcnt(0)
        s_sub_u32 s22, s22, s82
        s_cmp_lt_u32 s22, s3
        s_cbranch_scc1 L_amp""")
    e("L_end:\ns_endpgm")

def generate(c):
    e = E()
    prologue(e, c); dequant(e, c); t_compute(e, c); xr_compute(e, c); p2_compute(e, c); loader(e, c); fin(e, c)
    head = open("standalone__weight_only_int_quip__prompt.s.ref").read().split("; Override")[0]
    return f"""{head}; y = (x U) (dequant(qw) V).  240 workgroups first dequantise qw once into MFMA fragment order; 192 workgroups
; @launch grid=(256,1,1) block=(512,1,1) lds=163840
.amdgcn_target "amdgcn-amd-amdhsa--gfx950"
.text
.globl {KN}
.p2align 8
.type {KN},@function
{KN}:
{e.text()}
.section .rodata,"a"
.p2align 6
.amdhsa_kernel {KN}
  .amdhsa_next_free_vgpr 256
  .amdhsa_next_free_sgpr 96
  .amdhsa_accum_offset 112
  .amdhsa_group_segment_fixed_size 0
  .amdhsa_kernarg_size 72
  .amdhsa_user_sgpr_count 2
  .amdhsa_user_sgpr_kernarg_segment_ptr 1
  .amdhsa_system_sgpr_workgroup_id_x 1
.end_amdhsa_kernel
"""
if __name__ == "__main__":
    c = Cfg()
    out = sys.argv[1]
    for kv in sys.argv[2:]:
        k, v = kv.split("=")
        setattr(c, k, type(getattr(c, k))(int(v)) if isinstance(getattr(c, k), (bool, int)) else v.replace("_", " "))
    open(out, "w").write(generate(c))
```
